```python
import torch

def _softmax(x, axis=-1):
    return torch.softmax(x, dim=axis)
def _gelu(x):
    return torch.nn.functional.gelu(x, approximate="tanh")
def _silu(x):
    return torch.nn.functional.silu(x)
def _sigmoid(x):
    return torch.sigmoid(x)
def _layernorm(x, axis=-1, eps=1e-5):
    m = x.mean(dim=axis, keepdim=True)
    v = x.var(dim=axis, keepdim=True, unbiased=False)
    return (x - m) / torch.sqrt(v + eps)
def _scatter_add(tgt, idx, src, axis=0):
    return tgt.clone().index_add_(axis, idx, src)
def _segment_sum(src, seg, n):
    out = torch.zeros((n,) + src.shape[1:], dtype=src.dtype)
    return out.index_add_(0, seg, src)
def _pad(x, pw):
    flat = tuple(v for pair in reversed(pw) for v in pair)
    return torch.nn.functional.pad(x, flat)

kernel_name = 'concat_heads__linear_kernel_hedgehog__compressed_kv_cla__prompt'

def setup_inputs():

    _w = (lambda a: (lambda t: t.to(torch.bfloat16) if t.is_floating_point() else t)(torch.as_tensor(a)))
    def _A_setup():
        B, S, D, H = 1, 2048, 640, 32
        Dh = D // H
        return {
            "x": _w((lambda *s: torch.randn(*s, dtype=torch.bfloat16) * 0.4)(B, S, D)),
            "wqkv": _w((lambda *s: torch.randn(*s, dtype=torch.bfloat16) * 0.4)(D, 3 * D)),
            "w_phi": _w((lambda *s: torch.randn(*s, dtype=torch.bfloat16) * 0.4)(H, Dh, Dh) * (Dh ** -0.5)),
            "wo": _w((lambda *s: torch.randn(*s, dtype=torch.bfloat16) * 0.05)(D, D)),
        }
    _A_in = _A_setup()

    def _B_setup():
        B, H, Sq, Sk, D, M = 1, 32, 2048, 2048, 128, 640
        Dc = 4 * D
        return {
            "x": _w((lambda *s: torch.randn(*s, dtype=torch.bfloat16) * 0.8)(B, Sq, M)),
            "c_kv": _w((lambda *s: torch.randn(*s, dtype=torch.bfloat16) * 0.4)(B, Sk, Dc)),
            "w_q": _w((lambda *s: torch.randn(*s, dtype=torch.bfloat16) * 6.4)(M, H, D) * (M ** -0.5)),
            "w_uk": _w((lambda *s: torch.randn(*s, dtype=torch.bfloat16) * 6.4)(Dc, H, D) * (Dc ** -0.5)),
            "w_uv": _w((lambda *s: torch.randn(*s, dtype=torch.bfloat16) * 0.4)(Dc, H, D) * (Dc ** -0.5)),
            "w_o": _w((lambda *s: torch.randn(*s, dtype=torch.bfloat16) * 0.4)(H, D, M) * ((H * D) ** -0.5)),
        }
    _B_in = _B_setup()

    return {
        "A_x": _A_in["x"],
        "A_wqkv": _A_in["wqkv"],
        "A_w_phi": _A_in["w_phi"],
        "A_wo": _A_in["wo"],
        "B_x": _B_in["x"],
        "B_c_kv": _B_in["c_kv"],
        "B_w_q": _B_in["w_q"],
        "B_w_uk": _B_in["w_uk"],
        "B_w_uv": _B_in["w_uv"],
        "B_w_o": _B_in["w_o"],
    }

def reference(A_x, A_wqkv, A_w_phi, A_wo, B_x, B_c_kv, B_w_q, B_w_uk, B_w_uv, B_w_o):
    def _A_ref(x, wqkv, w_phi, wo):
        B, S, D = x.shape
        H = 32; Dh = D // H
        qkv = (lambda x, *d: x.permute(*d))((x @ wqkv).reshape(B, S, 3, H, Dh), 2, 0, 3, 1, 4)
        q, k, v = qkv[0], qkv[1], qkv[2]
        pq = torch.einsum("bhsd,hdf->bhsf", q, w_phi)
        pk = torch.einsum("bhsd,hdf->bhsf", k, w_phi)
        phi_q = torch.concatenate([_softmax(pq, axis=-1), _softmax(-pq, axis=-1)], axis=-1)
        phi_k = torch.concatenate([_softmax(pk, axis=-1), _softmax(-pk, axis=-1)], axis=-1)
        kv = torch.einsum("bhsf,bhsd->bhfd", phi_k, v)
        z  = torch.einsum("bhsf->bhf", phi_k)
        num = torch.einsum("bhqf,bhfd->bhqd", phi_q, kv)
        den = torch.einsum("bhqf,bhf->bhq", phi_q, z)[..., None] + 1e-6
        o = num / den
        return (lambda x, *d: x.permute(*d))(o, 0, 2, 1, 3).reshape(B, S, D) @ wo

    def _B_ref(x, c_kv, w_q, w_uk, w_uv, w_o):
        B, Sq, M = x.shape[0], x.shape[1], x.shape[2]
        Sk = c_kv.shape[1]
        H, D = w_q.shape[1], w_q.shape[2]
        q = torch.einsum("bqm,mhd->bhqd", x, w_q)
        k = torch.einsum("bkc,chd->bhkd", c_kv, w_uk)
        v = torch.einsum("bkc,chd->bhkd", c_kv, w_uv)
        scores = torch.einsum("bhqd,bhkd->bhqk", q, k) * (D ** -0.5)
        off = Sk - Sq
        qi = torch.arange(Sq)[:, None]
        kj = torch.arange(Sk)[None, :]
        cmask = kj <= (qi + off)
        scores = torch.where(cmask[None, None], scores, -1e9)
        p = _softmax(scores, axis=-1)
        ctx = torch.einsum("bhqk,bhkd->bhqd", p, v)
        return torch.einsum("bhqd,hdm->bqm", ctx, w_o)

    a = _A_ref(A_x, A_wqkv, A_w_phi, A_wo)
    b = _B_ref(B_x, B_c_kv, B_w_q, B_w_uk, B_w_uv, B_w_o)
    return torch.concatenate([a, b], axis=-1)
```

```python
import re

REG_RE = re.compile(r'^(-|abs\()?([vsa])(\d+)\)?$')
RNG_RE = re.compile(r'^(-|abs\()?([vsa])\[(\d+):(\d+)\]\)?$')

TRANS = ('v_exp_f32', 'v_log_f32', 'v_rcp_f32', 'v_rsq_f32', 'v_sqrt_f32', 'v_sin_f32', 'v_cos_f32',
         'v_rcp_iflag_f32')


def v(n, c=1):
    return f'v{n}' if c == 1 else f'v[{n}:{n + c - 1}]'


def s(n, c=1):
    return f's{n}' if c == 1 else f's[{n}:{n + c - 1}]'


def regs_of(tok):
    tok = tok.strip()
    m = REG_RE.match(tok)
    if m:
        return {(m.group(2), int(m.group(3)))}
    m = RNG_RE.match(tok)
    if m:
        return {(m.group(2), i) for i in range(int(m.group(3)), int(m.group(4)) + 1)}
    if tok in ('vcc', 'vcc_lo', 'vcc_hi'):
        return {('x', 'vcc')}
    if tok in ('exec', 'exec_lo', 'exec_hi'):
        return {('x', 'exec')}
    if tok == 'm0':
        return {('x', 'm0')}
    if tok == 'scc':
        return {('x', 'scc')}
    return set()


class Inst:
    __slots__ = ('text', 'op', 'kind', 'rd', 'wr', 'srcA', 'srcB', 'srcC', 'passes', 'target', 'label',
                 'nop', 'vm', 'lgkm', 'storedata', 'comment', 'wide', 'auto')

    def __init__(self, text):
        self.text = text
        self.op = ''
        self.kind = ''
        self.rd = set()
        self.wr = set()
        self.srcA = self.srcB = self.srcC = set()
        self.passes = 0
        self.target = None
        self.label = None
        self.nop = 1
        self.vm = None
        self.lgkm = None
        self.storedata = set()
        self.wide = False
        self.auto = False


def split_ops(rest):
    out, depth, cur = [], 0, ''
    for ch in rest:
        if ch in '[(':
            depth += 1
        if ch in '])':
            depth -= 1
        if ch == ',' and depth == 0:
            out.append(cur.strip())
            cur = ''
        else:
            cur += ch
    if cur.strip():
        out.append(cur.strip())
    return out


def parse(text):
    t = text.split(';')[0].strip()
    ins = Inst(text)
    if t.endswith(':'):
        ins.kind = 'label'
        ins.label = t[:-1]
        ins.nop = 0
        return ins
    if t.startswith('.') or not t:
        ins.kind = 'directive'
        ins.nop = 0
        return ins
    parts = t.split(None, 1)
    op = parts[0]
    rest = parts[1] if len(parts) > 1 else ''
    ins.op = op
    ops = split_ops(rest)
    mods = []
    if ops:
        last = ops[-1].split()
        ops[-1] = last[0] if last else ''
        mods = last[1:]
    R = [regs_of(o) for o in ops]

    def allr(lst):
        o = set()
        for x in lst:
            o |= x
        return o

    if op.startswith('v_mfma'):
        ins.kind = 'mfma'
        ins.wr = R[0]
        ins.srcA, ins.srcB, ins.srcC = R[1], R[2], R[3]
        ins.rd = R[1] | R[2] | R[3]
        ins.passes = 8 if '32x32x16' in op else 4
        assert '32x32x16' in op or '16x16x32' in op
    elif op.startswith('v_cmp'):
        ins.kind = 'valu'
        ins.wr = R[0]
        ins.rd = allr(R[1:])
        assert not op.startswith('v_cmpx')
    elif op.startswith('v_readfirstlane') or op.startswith('v_readlane'):
        ins.kind = 'valu'
        ins.wr = R[0]
        ins.rd = allr(R[1:])
    elif op.startswith('v_permlane'):
        ins.kind = 'valu'
        ins.wr = R[0] | R[1]
        ins.rd = R[0] | R[1]
    elif op.startswith('v_add_co') or op.startswith('v_sub_co') or op.startswith('v_addc_co') or op.startswith('v_subb_co'):
        ins.kind = 'valu'
        ins.wr = R[0] | R[1]
        ins.rd = allr(R[2:])
    elif op.startswith('v_'):
        ins.kind = 'valu'
        ins.wr = R[0]
        ins.rd = allr(R[1:])
        if op.startswith('v_fmac') or op.startswith('v_dot2c') or op.startswith('v_pk_fmac') or op.startswith('v_writelane'):
            ins.rd |= R[0]
        if op.startswith('v_cndmask') and len(ops) == 3:
            ins.rd |= {('x', 'vcc')}
        if '_dpp' in op or any(m.startswith('row_') or m.startswith('quad_perm') for m in mods):
            ins.rd |= R[0]
            ins.kind = 'valu'
            ins.op = op + '#dpp'
    elif op.startswith('ds_read') or op.startswith('ds_bpermute') or op.startswith('ds_swizzle') or op.startswith('ds_permute'):
        ins.kind = 'dsr'
        ins.wr = R[0]
        ins.rd = allr(R[1:])
    elif op.startswith('ds_'):
        ins.kind = 'dsw'
        ins.rd = allr(R)
    elif op.startswith('buffer_load') or op.startswith('global_load'):
        if 'lds' in mods or '_lds_' in op:
            ins.kind = 'dma'
            ins.rd = allr(R) | {('x', 'm0')}
        else:
            ins.kind = 'vld'
            ins.wr = R[0]
            ins.rd = allr(R[1:])
            if 'd16' in op:
                ins.rd |= R[0]
    elif op.startswith('buffer_store') or op.startswith('global_store') or op.startswith('buffer_atomic') or op.startswith('global_atomic'):
        ins.kind = 'vst'
        ins.rd = allr(R)
        ins.storedata = R[0] if op.startswith('buffer') else R[1]
        ins.wide = 'x4' in op or 'x3' in op
        if 'atomic' in op and 'sc0' in mods:
            ins.kind = 'vld'
            ins.wr = R[0]
    elif op.startswith('buffer_wbl2') or op.startswith('buffer_inv'):
        ins.kind = 'vst'
    elif op.startswith('s_load') or op.startswith('s_memtime') or op.startswith('s_memrealtime') or op.startswith('s_buffer_load'):
        ins.kind = 'smem'
        ins.wr = R[0]
        ins.rd = allr(R[1:])
    elif op == 's_waitcnt':
        ins.kind = 'wait'
        m = re.search(r'vmcnt\((\d+)\)', t)
        ins.vm = int(m.group(1)) if m else None
        m = re.search(r'lgkmcnt\((\d+)\)', t)
        ins.lgkm = int(m.group(1)) if m else None
    elif op == 's_nop':
        ins.kind = 'nop'
        ins.nop = int(ops[0], 0) + 1
    elif op == 's_barrier':
        ins.kind = 'barrier'
    elif op == 's_endpgm':
        ins.kind = 'end'
    elif op == 's_branch':
        ins.kind = 'jump'
        ins.target = ops[0]
    elif op.startswith('s_cbranch'):
        ins.kind = 'cbranch'
        ins.target = ops[0]
        if 'vcc' in op:
            ins.rd = {('x', 'vcc')}
    elif op.startswith('s_cmp') or op.startswith('s_bitcmp'):
        ins.kind = 'salu'
        ins.rd = allr(R)
    elif op in ('s_setprio', 's_sleep', 's_setreg_b32', 's_setreg_imm32_b32', 's_set_gpr_idx_off'):
        ins.kind = 'salu'
    elif op == 's_set_gpr_idx_on':
        ins.kind = 'salu'
        ins.rd = R[0]
        ins.wr = {('x', 'm0')}
    elif op.startswith('s_'):
        ins.kind = 'salu'
        ins.wr = R[0]
        ins.rd = allr(R[1:])
        if 'saveexec' in op:
            ins.wr |= {('x', 'exec')}
        if op.startswith('s_addk') or op.startswith('s_mulk'):
            ins.rd |= R[0]
    else:
        raise ValueError('unknown op: ' + text)
    return ins


def isv(r):
    return r[0] in ('v', 'a')


class Prog:
    def __init__(self):
        self.ins = []
        self.nlabel = 0

    def e(self, text):
        for line in text.split('\n'):
            line = line.strip()
            if line:
                self.ins.append(parse(line))

    def ext(self, lst):
        for x in lst:
            if isinstance(x, (list, tuple)):
                self.ext(x)
            else:
                self.e(x)

    def newlabel(self, base='L'):
        self.nlabel += 1
        return f'{base}_{self.nlabel}'

    def label(self, name):
        self.e(name + ':')

    def _cfg(self):
        ins = self.ins
        lab = {x.label: i for i, x in enumerate(ins) if x.kind == 'label'}
        succ = [[] for _ in ins]
        for i, x in enumerate(ins):
            if x.kind == 'end':
                continue
            if x.kind == 'jump':
                succ[i].append(lab[x.target])
                continue
            if x.kind == 'cbranch':
                succ[i].append(lab[x.target])
            if i + 1 < len(ins):
                succ[i].append(i + 1)
        pred = [[] for _ in ins]
        for i, sl in enumerate(succ):
            for j in sl:
                pred[j].append(i)
        return succ, pred

    def auto_waits(self):
        ins = self.ins
        succ, pred = self._cfg()
        n = len(ins)
        instate = [None] * n
        instate[0] = ({}, {})
        need = [None] * n
        work = [0]
        inwork = {0}

        def transfer(i, st):
            vm, lg = dict(st[0]), dict(st[1])
            x = ins[i]
            touched = x.rd | x.wr
            wv = wl = None
            for r in touched:
                if r in vm:
                    if x.kind == 'vld' and r in x.wr and (r not in x.rd or 'd16' in x.op):
                        continue
                    wv = vm[r] if wv is None else min(wv, vm[r])
                if r in lg:
                    if x.kind == 'dsr' and r in x.wr and r not in x.rd:
                        continue
                    wl = lg[r] if wl is None else min(wl, lg[r])
            if wv is not None:
                wv = min(wv, 63)
                vm = {r: a for r, a in vm.items() if a < wv}
            if wl is not None:
                wl = min(wl, 15)
                lg = {r: a for r, a in lg.items() if a < wl}
            if x.kind == 'wait':
                if x.vm is not None:
                    vm = {r: a for r, a in vm.items() if a < x.vm}
                if x.lgkm is not None:
                    lg = {r: a for r, a in lg.items() if a < x.lgkm}
            elif x.kind in ('vld', 'vst', 'dma'):
                vm = {r: a + 1 for r, a in vm.items()}
                if x.kind == 'vld':
                    for r in x.wr:
                        vm[r] = 0
            elif x.kind in ('dsr', 'dsw'):
                lg = {r: a + 1 for r, a in lg.items()}
                if x.kind == 'dsr':
                    for r in x.wr:
                        lg[r] = 0
            elif x.kind == 'smem':
                lg = {r: 0 for r in lg}
                for r in x.wr:
                    lg[r] = 0
                lg[('x', 'smem')] = 0
            if ('x', 'smem') in lg and x.kind in ('dsr', 'dsw'):
                lg = {r: 0 for r in lg}
            return (vm, lg), (wv, wl)

        def merge(a, b):
            if a is None:
                return b, True
            ch = False
            out = []
            for da, db in zip(a, b):
                d = dict(da)
                for r, x in db.items():
                    if r not in d or x < d[r]:
                        d[r] = x
                        ch = True
                out.append(d)
            return tuple(out), ch

        while work:
            i = work.pop()
            inwork.discard(i)
            out, w = transfer(i, instate[i])
            need[i] = w
            for j in succ[i]:
                m, ch = merge(instate[j], out)
                if ch:
                    instate[j] = m
                    if j not in inwork:
                        work.append(j)
                        inwork.add(j)
        new = []
        for i, x in enumerate(ins):
            w = need[i]
            if w and (w[0] is not None or w[1] is not None):
                t = 's_waitcnt'
                if w[0] is not None:
                    t += f' vmcnt({w[0]})'
                if w[1] is not None:
                    t += f' lgkmcnt({w[1]})'
                y = parse(t)
                y.auto = True
                new.append(y)
            new.append(x)
        self.ins = new

    @staticmethod
    def _required(p, c):
        req = 0
        pk, ck = p.kind, c.kind
        if pk == 'valu':
            wv = {r for r in p.wr if isv(r)}
            ws = p.wr - wv
            if ck == 'mfma' and wv & c.rd:
                req = max(req, 2)
            if ck == 'valu':
                if c.op.startswith('v_permlane') and wv & c.rd:
                    req = max(req, 2)
                if c.op.endswith('#dpp') and wv & c.rd:
                    req = max(req, 2)
                if (c.op.startswith('v_readfirstlane') or c.op.startswith('v_readlane')) and wv & c.rd:
                    req = max(req, 1)
                if ws & c.rd:
                    req = max(req, 4 if c.op.startswith('v_readlane') or c.op.startswith('v_writelane') else 2)
            if p.op.split('_e')[0] in TRANS and ck in ('valu', 'dsw', 'vst', 'dsr', 'vld', 'dma') and wv & (c.rd | c.wr):
                req = max(req, 1)
            if ck in ('vld', 'vst', 'dma') and ws & c.rd:
                req = max(req, 5)
            if ck == 'cbranch' and ws & c.rd:
                req = max(req, 1)
            if ck == 'salu' and ws & c.rd:
                req = max(req, 1)
        elif pk == 'mfma':
            P = p.passes
            if ck == 'mfma':
                if p.wr & c.srcC:
                    if p.wr == c.srcC and c.passes == P:
                        pass
                    else:
                        req = max(req, P + 2)
                if p.wr & (c.srcA | c.srcB):
                    req = max(req, P + 4)
                if p.wr & c.wr and not (p.wr == c.srcC):
                    req = max(req, P + 2)
            elif ck in ('valu', 'dsr', 'dsw', 'vld', 'vst', 'dma'):
                if p.wr & (c.rd | c.wr):
                    req = max(req, P + 4)
                if ck == 'valu' and p.srcC & c.wr:
                    req = max(req, P - 1)
        elif pk == 'salu':
            if ('x', 'm0') in p.wr and ck == 'dma':
                req = max(req, 1)
        elif pk == 'vst':
            if p.wide and p.storedata & c.wr:
                req = max(req, 2)
        return req

    def fix_hazards(self, maxd=13):
        changed = True
        while changed:
            changed = False
            ins = self.ins
            succ, pred = self._cfg()
            add = {}
            for i, c in enumerate(ins):
                if c.kind in ('label', 'directive', 'nop', 'wait', 'barrier', 'end', 'jump'):
                    continue
                best = 0
                stack = [(j, 0) for j in pred[i]]
                seen = {}
                while stack:
                    j, d = stack.pop()
                    if d >= maxd:
                        continue
                    if j in seen and seen[j] <= d:
                        continue
                    seen[j] = d
                    p = ins[j]
                    r = self._required(p, c) if p.kind in ('valu', 'mfma', 'salu', 'vst') else 0
                    if r > d:
                        best = max(best, r - d)
                    nd = d + p.nop + add.get(j, 0)
                    for k in pred[j]:
                        stack.append((k, nd))
                if best > 0:
                    add[i] = best
            if add:
                new = []
                for i, x in enumerate(ins):
                    if i in add:
                        k = add[i]
                        y = parse(f's_nop {k - 1}')
                        y.auto = True
                        new.append(y)
                    new.append(x)
                self.ins = new
                changed = True

    def finalize(self):
        self.auto_waits()
        self.fix_hazards()

    def text(self):
        out = []
        for x in self.ins:
            if x.kind in ('label',):
                out.append(x.text)
            else:
                out.append('  ' + x.text + ('   ; auto' if x.auto else ''))
        return '\n'.join(out) + '\n'

    def max_regs(self):
        mv = ms = -1
        for x in self.ins:
            for r in x.rd | x.wr:
                if r[0] == 'v':
                    mv = max(mv, r[1])
                elif r[0] == 's':
                    ms = max(ms, r[1])
        return mv + 1, ms + 1

    def stats(self):
        from collections import Counter
        c = Counter(x.kind for x in self.ins)
        c['auto_nop'] = sum(1 for x in self.ins if x.auto and x.kind == 'nop')
        c['auto_wait'] = sum(1 for x in self.ins if x.auto and x.kind == 'wait')
        return dict(c)


def interleave(main, fillers, start=0, end=None):
    n = len(main)
    end = n if end is None else end
    slots = [[] for _ in range(n)]
    g = end - start
    for k, f in enumerate(fillers):
        slots[start + (k * g) // len(fillers)].append(f)
    return slots


def kernel_text(name, prog, lds_unused=0):
    nv, ns = prog.max_regs()
    nv = max(nv, 8)
    acc = (nv + 3) // 4 * 4
    t = f'.text\n.globl {name}\n.p2align 8\n.type {name},@function\n{name}:\n'
    t += prog.text()
    d = f'''.section .rodata,"a"
.p2align 6
.amdhsa_kernel {name}
  .amdhsa_next_free_vgpr {nv}
  .amdhsa_next_free_sgpr {max(ns, 16)}
  .amdhsa_accum_offset {acc}
  .amdhsa_group_segment_fixed_size 0
  .amdhsa_kernarg_size 104
  .amdhsa_user_sgpr_count 2
  .amdhsa_user_sgpr_kernarg_segment_ptr 1
  .amdhsa_system_sgpr_workgroup_id_x 1
  .amdhsa_float_denorm_mode_32 3
.end_amdhsa_kernel
'''
    return t, d


class Stamps:
    def __init__(self, p, vreg, stmp, enabled):
        self.p, self.vreg, self.stmp, self.en, self.n = p, vreg, stmp, enabled, 0

    def start(self):
        if not self.en:
            return
        p = self.p
        p.e(f'v_mov_b32 {v(self.vreg)}, 0')
        p.e(f's_memrealtime {s(self.stmp,2)}')
        p.e('s_waitcnt lgkmcnt(0)')
        p.e(f'v_writelane_b32 {v(self.vreg)}, {s(self.stmp)}, 30')
        self.stamp()

    def stamp(self, idx=None):
        if not self.en:
            return
        p = self.p
        if idx is None:
            idx = self.n
        self.n = max(self.n, idx + 1)
        p.e(f's_memtime {s(self.stmp,2)}')
        p.e(f's_memrealtime {s(self.stmp+4,2)}')
        p.e('s_waitcnt lgkmcnt(0)')
        p.e(f'v_writelane_b32 {v(self.vreg)}, {s(self.stmp)}, {idx}')
        p.e(f'v_writelane_b32 {v(self.vreg)}, {s(self.stmp+4)}, {idx+32}')

    def stamp_dyn(self, sidx):
        if not self.en:
            return
        p = self.p
        p.e(f's_memtime {s(self.stmp,2)}')
        p.e(f's_memrealtime {s(self.stmp+4,2)}')
        p.e('s_waitcnt lgkmcnt(0)')
        p.e(f's_mov_b32 {s(self.stmp+1)}, m0')
        p.e(f's_mov_b32 m0, {s(sidx)}')
        p.e(f'v_writelane_b32 {v(self.vreg)}, {s(self.stmp)}, m0')
        p.e(f's_add_u32 m0, {s(sidx)}, 32')
        p.e(f'v_writelane_b32 {v(self.vreg)}, {s(self.stmp+4)}, m0')
        p.e(f's_mov_b32 m0, {s(self.stmp+1)}')

    def flush(self, srd, swave, base, n, vt):
        if not self.en:
            return
        p = self.p
        p.e('s_waitcnt vmcnt(0)')
        p.e(f's_memrealtime {s(self.stmp,2)}')
        p.e('s_waitcnt lgkmcnt(0)')
        p.e(f'v_writelane_b32 {v(self.vreg)}, {s(self.stmp)}, 29')
        p.e(f's_mov_b32 {s(self.stmp)}, {n}')
        p.e(f'v_writelane_b32 {v(self.vreg)}, {s(self.stmp)}, 31')
        p.e(f's_lshl_b32 {s(self.stmp)}, s2, 3')
        p.e(f's_add_u32 {s(self.stmp)}, {s(self.stmp)}, {s(swave)}')
        p.e(f's_lshl_b32 {s(self.stmp)}, {s(self.stmp)}, 8')
        p.e(f's_add_u32 {s(self.stmp)}, {s(self.stmp)}, {base}')
        p.e(f'v_mbcnt_lo_u32_b32 {v(vt)}, -1, 0')
        p.e(f'v_mbcnt_hi_u32_b32 {v(vt)}, -1, {v(vt)}')
        p.e(f'v_lshlrev_b32 {v(vt)}, 2, {v(vt)}')
        p.e(f'buffer_store_dword {v(self.vreg)}, {v(vt)}, {s(srd,4)}, {s(self.stmp)} offen')
```

```python
from asmlib import *
from layout import *
import struct, os
SM = os.environ.get('SM', '')
SM = (' ' + SM.replace('_', ' ')) if SM else ''
NOST = int(os.environ.get('NOST', '0'))
VMW = int(os.environ.get('VMW', '12'))


def f32hex(x):
    return '0x%08x' % struct.unpack('<I', struct.pack('<f', x))[0]


V_LANE = 1
V_L16 = 2
V_XRD = 8
V_WRD = 9
V_DX = 16
V_DW = 18
V_DX2 = 20
V_DW2 = 22
V_XF = 24
V_WF = 40
V_ST = 88
V_T = 96
V_PK = 96
V_ACC = 128
V_ACC2 = 160

S_W = 3
S_RB = 4
S_CT = 5
S_ISV = 6
S_OUT = 7
S_PTR = 8
S_SX = 36
S_SW = 40
S_WS = 44
S_SX2 = 48
S_SW2 = 52
S_XOFF = 56
S_WOFF = 57
S_WINC = 58
S_WINC2 = 59
S_M0 = 60
S_DELTA = 61
S_CNT = 62
S_RSLOT = 63
S_T = 64
S_C2 = 80
S_ROWB = 81
S_NTB = 82
S_IDX = 83
S_PHI = 84
S_M0END = 88
S_OINC = 34
S_OX = 35

NSLOT = 5
SLOT = 32768
OOB = 0x7FF00000
ADJ = 4096


def ptr(name):
    return S_PTR + KA[name] // 4


def srd(p, dst, name, size):
    p.e(f's_mov_b32 {s(dst)}, {s(ptr(name))}')
    p.e(f's_mov_b32 {s(dst+1)}, {s(ptr(name)+1)}')
    p.e(f's_mov_b32 {s(dst+2)}, {size}')
    p.e(f's_mov_b32 {s(dst+3)}, 0x00020000')


def dma_lines():
    L = []
    L.append([f's_mov_b32 m0, {s(S_M0)}',
              f's_add_u32 {s(S_M0)}, {s(S_M0)}, {SLOT}',
              f'buffer_load_dwordx4 {v(V_DX)}, {s(S_SX,4)}, {s(S_XOFF)} offen lds'])
    L.append([f'buffer_load_dwordx4 {v(V_DX+1)}, {s(S_SX,4)}, {s(S_XOFF)} offen offset:1024 lds',
              f's_add_u32 {s(S_XOFF)}, {s(S_XOFF)}, 64',
              f's_cmp_ge_u32 {s(S_M0)}, {NSLOT*SLOT}'])
    L.append([f'buffer_load_dwordx4 {v(V_DW)}, {s(S_SW,4)}, {s(S_WOFF)} offen offset:2048 lds',
              f's_cselect_b32 {s(S_M0)}, {s(S_M0END)}, {s(S_M0)}'])
    L.append([f'buffer_load_dwordx4 {v(V_DW+1)}, {s(S_SW,4)}, {s(S_WOFF)} offen offset:3072 lds',
              f's_add_u32 {s(S_WOFF)}, {s(S_WOFF)}, {s(S_WINC)}'])
    return L


def xread(st):
    return f'ds_read_b128 {v(V_XF+4*(st%4),4)}, {v(V_XRD)} offset:{(st>>1)*4096+(st&1)*1024}'


def wreads(fs, NT):
    return [f'ds_read_b64_tr_b16 {v(V_WF+fs*24+4*nt+2*j,2)}, {v(V_WRD+nt)} offset:{j*4096}'
            for nt in range(NT) for j in range(2)]


def stage(p, fs, NS, NT, orient, accb, extra=None):
    def mf(st, nt):
        ai = st * NT + nt if orient == 0 else ((st >> 1) * NT + nt) * 2 + (st & 1)
        acc = v(accb + 4 * ai, 4)
        x = v(V_XF + 4 * (st % 4), 4)
        w = v(V_WF + fs * 24 + 4 * nt, 4)
        a, bb = (w, x) if orient == 0 else (x, w)
        return f'v_mfma_f32_16x16x32_bf16 {acc}, {a}, {bb}, {acc}'
    upd = [f's_add_u32 {s(S_RSLOT)}, {s(S_RSLOT)}, {SLOT}',
           f's_cmp_ge_u32 {s(S_RSLOT)}, {NSLOT*SLOT}',
           f's_cselect_b32 {s(S_RSLOT)}, 0, {s(S_RSLOT)}',
           f's_cselect_b32 {s(S_DELTA)}, {-(NSLOT-1)*SLOT}, {s(S_T+15)}']
    au = [f'v_add_u32 {v(r)}, {s(S_DELTA)}, {v(r)}' for r in [V_WRD + i for i in range(NT)] + [V_XRD]]
    pre = [mf(st, nt) for st in range(NS - 2) for nt in range(NT)]
    slots = [[] for _ in pre]
    slots[0] += [xread(2)] + upd
    slots[1] += [xread(3)]
    for st in range(4, NS):
        slots[(st - 3) * NT].append(xread(st))
    for i, a in enumerate(au[:-1]):
        slots[2 + i].append(a)
    slots[max((NS - 4) * NT + 1, 2 + NT)].append(au[-1])
    for m, a in zip(pre, slots):
        p.e(m)
        p.ext(a)
    p.e(f's_waitcnt vmcnt({VMW}) lgkmcnt(0)')
    p.e('s_barrier')
    post = [mf(st, nt) for st in range(NS - 2, NS) for nt in range(NT)]
    n = len(post)
    wr = wreads(fs ^ 1, NT)
    rd = [xread(0)] + wr[:4] + [xread(1)] + wr[4:]
    slots = interleave(post, rd, 0, n - 2)
    d = interleave(post, dma_lines(), 0, n - 2)
    for i, (m, a, b) in enumerate(zip(post, slots, d)):
        p.e(m)
        p.ext(a)
        p.ext(b)
        if extra and i == n - 2:
            extra()


def first_reads(p, NT):
    wr = wreads(0, NT)
    p.ext([xread(0)] + wr + [xread(1)])


def read_addrs(p, NT):
    t = V_ST
    p.e(f's_lshl_b32 {s(S_T)}, {s(S_ROWB)}, 7')
    p.e(f's_add_u32 {s(S_T)}, {s(S_T)}, {s(S_RSLOT)}')
    p.e(f'v_and_b32 {v(t)}, 15, {v(V_LANE)}')
    p.e(f'v_lshlrev_b32 {v(t+1)}, 6, {v(t)}')
    p.e(f'v_add_u32 {v(t+1)}, {s(S_T)}, {v(t+1)}')
    p.e(f'v_bfe_u32 {v(t)}, {v(V_LANE)}, 2, 2')
    p.e(f'v_lshrrev_b32 {v(t+3)}, 4, {v(V_LANE)}')
    p.e(f'v_and_b32 {v(t+2)}, 2, {v(t)}')
    p.e(f'v_xor_b32 {v(t+2)}, {v(t+2)}, {v(t+3)}')
    p.e(f'v_lshl_add_u32 {v(V_XRD)}, {v(t+2)}, 4, {v(t+1)}')
    p.e(f'v_lshlrev_b32 {v(t+1)}, 13, {v(t+3)}')
    p.e(f'v_lshl_add_u32 {v(t+1)}, {v(t)}, 9, {v(t+1)}')
    p.e(f'v_and_b32 {v(t+2)}, 3, {v(V_LANE)}')
    p.e(f'v_lshl_add_u32 {v(t+1)}, {v(t+2)}, 3, {v(t+1)}')
    p.e(f's_add_u32 {s(S_T)}, {s(S_RSLOT)}, 2048')
    p.e(f'v_add_u32 {v(t+1)}, {s(S_T)}, {v(t+1)}')
    p.e(f'v_bfe_u32 {v(t+2)}, {v(V_LANE)}, 2, 3')
    for nt in range(NT):
        p.e(f's_add_u32 {s(S_T)}, {s(S_NTB)}, {nt}')
        p.e(f'v_xor_b32 {v(t+4)}, {s(S_T)}, {v(t+2)}')
        p.e(f'v_lshl_add_u32 {v(V_WRD+nt)}, {v(t+4)}, 5, {v(t+1)}')


def dma_x_offs(p, dst, stride):
    t = V_T
    p.e(f's_lshl_b32 {s(S_T)}, {s(S_RB)}, 8')
    p.e(f's_lshl_b32 {s(S_T+1)}, {s(S_W)}, 5')
    p.e(f's_add_u32 {s(S_T)}, {s(S_T)}, {s(S_T+1)}')
    p.e(f'v_lshrrev_b32 {v(t)}, 2, {v(V_LANE)}')
    p.e(f'v_add_u32 {v(t)}, {s(S_T)}, {v(t)}')
    p.e(f'v_mul_u32_u24 {v(t)}, {stride}, {v(t)}')
    p.e(f'v_and_b32 {v(t+1)}, 3, {v(V_LANE)}')
    p.e(f'v_lshrrev_b32 {v(t+2)}, 4, {v(V_LANE)}')
    p.e(f'v_and_b32 {v(t+2)}, 2, {v(t+2)}')
    p.e(f'v_xor_b32 {v(t+1)}, {v(t+1)}, {v(t+2)}')
    p.e(f'v_lshl_add_u32 {v(dst)}, {v(t+1)}, 4, {v(t)}')
    p.e(f'v_add_u32 {v(dst+1)}, {16*stride-1024}, {v(dst)}')


def build(name='k1_kernel', a2=True, stamps=False):
    p = Prog()
    st_ = Stamps(p, 7, 90, stamps)
    p.e('s_cmp_ge_u32 s2, 256')
    p.e('s_cbranch_scc1 K1_END')
    st_.start()
    p.e(f's_load_dwordx16 {s(S_PTR,16)}, s[0:1], 0')
    p.e(f's_load_dwordx8 {s(S_PTR+16,8)}, s[0:1], 64')
    p.e(f's_load_dwordx2 {s(S_PTR+24,2)}, s[0:1], 96')
    p.e(f'v_lshrrev_b32 {v(2)}, 6, v0')
    p.e(f'v_and_b32 {v(V_LANE)}, 63, v0')
    p.e(f'v_readfirstlane_b32 {s(S_W)}, {v(2)}')
    p.e(f's_and_b32 {s(S_T)}, s2, 7')
    p.e(f's_bfe_u32 {s(S_RB)}, s2, 0x30003')
    p.e(f's_bfe_u32 {s(S_T+3)}, s2, 0x10006')
    p.e(f's_lshl_b32 {s(S_CT)}, {s(S_T)}, 1')
    p.e(f's_add_u32 {s(S_CT)}, {s(S_CT)}, {s(S_T+3)}')
    p.e(f's_lshr_b32 {s(S_ISV)}, s2, 7')
    dma_x_offs(p, V_DX, 1024)
    t = V_T
    p.e(f'v_lshrrev_b32 {v(t)}, 5, {v(V_LANE)}')
    p.e(f's_lshl_b32 {s(S_T)}, {s(S_W)}, 2')
    p.e(f'v_add_u32 {v(t+8)}, {s(S_T)}, {v(t)}')
    p.e(f'v_and_b32 {v(t+2)}, 31, {v(V_LANE)}')
    p.e(f'v_lshlrev_b32 {v(t+3)}, 1, {v(t)}')
    p.e(f's_and_b32 {s(S_T)}, {s(S_T)}, 8')
    p.e(f'v_xor_b32 {v(t+6)}, {v(t+2)}, {v(t+3)}')
    p.e(f'v_xor_b32 {v(t+6)}, {s(S_T)}, {v(t+6)}')
    p.e(f'v_xor_b32 {v(t+7)}, 4, {v(t+6)}')
    p.e(f'v_lshlrev_b32 {v(t+4)}, 13, {v(t+8)}')
    p.e(f's_lshl_b32 {s(S_T)}, {s(S_CT)}, 9')
    p.e(f's_add_u32 {s(S_T)}, {s(S_T)}, {ADJ-2048}')
    p.e(f'v_add_u32 {v(t+4)}, {s(S_T)}, {v(t+4)}')
    p.e(f'v_lshl_add_u32 {v(V_DW)}, {v(t+6)}, 4, {v(t+4)}')
    p.e(f'v_lshl_add_u32 {v(V_DW+1)}, {v(t+7)}, 4, {v(t+4)}')
    p.e(f'v_add_u32 {v(V_DW+1)}, {16384-1024}, {v(V_DW+1)}')
    p.e(f's_lshl_b32 {s(S_M0)}, {s(S_W)}, 12')
    p.e(f's_mov_b32 {s(S_M0END)}, {s(S_M0)}')
    p.e(f's_mov_b32 {s(S_XOFF)}, 0')
    p.e(f's_mov_b32 {s(S_WOFF)}, 0')
    p.e(f's_mov_b32 {s(S_WINC)}, {32*8192}')
    p.e(f's_mov_b32 {s(S_SW+2)}, {512*8192+ADJ}')
    p.e(f's_mov_b32 {s(S_SW+3)}, 0x00020000')
    p.e(f's_cmp_eq_u32 {s(S_ISV)}, 0')
    p.e('s_waitcnt lgkmcnt(0)')
    srd(p, S_SX, 'B_c_kv', 2048 * 1024)
    p.e(f's_cselect_b32 {s(S_SW)}, {s(ptr("B_w_uk"))}, {s(ptr("B_w_uv"))}')
    p.e(f's_cselect_b32 {s(S_SW+1)}, {s(ptr("B_w_uk")+1)}, {s(ptr("B_w_uv")+1)}')
    p.e(f's_sub_u32 {s(S_SW)}, {s(S_SW)}, {ADJ}')
    p.e(f's_subb_u32 {s(S_SW+1)}, {s(S_SW+1)}, 0')
    p.ext(dma_lines())
    p.ext(dma_lines())
    p.e(f's_mov_b32 {s(S_RSLOT)}, 0')
    p.e(f's_mov_b32 {s(S_T+15)}, {SLOT}')
    p.e(f's_and_b32 {s(S_T)}, {s(S_W)}, 1')
    p.e(f's_lshl_b32 {s(S_ROWB)}, {s(S_T)}, 7')
    p.e(f's_and_b32 {s(S_NTB)}, {s(S_W)}, 6')
    p.e(f's_lshl_b32 {s(S_NTB)}, {s(S_NTB)}, 1')
    read_addrs(p, 4)
    for i in range(64):
        p.e(f'v_mov_b32 {v(V_ACC+i)}, 0')
    p.ext(dma_lines())
    for i in range(64, 128):
        p.e(f'v_mov_b32 {v(V_ACC+i)}, 0')
    p.ext(dma_lines())
    srd(p, S_WS, 'ws', WS_SIZE)
    p.e(f's_lshr_b32 {s(S_T)}, {s(S_W)}, 2')
    p.e(f's_lshl_b32 {s(S_T+1)}, {s(S_CT)}, 1')
    p.e(f's_add_u32 {s(S_T)}, {s(S_T)}, {s(S_T+1)}')
    p.e(f's_lshl_b32 {s(S_OUT)}, {s(S_T)}, 19')
    p.e(f's_lshl_b32 {s(S_T)}, {s(S_RB)}, 16')
    p.e(f's_add_u32 {s(S_OUT)}, {s(S_OUT)}, {s(S_T)}')
    p.e(f's_lshl_b32 {s(S_T+1)}, {s(S_ROWB)}, 8')
    p.e(f's_add_u32 {s(S_OUT)}, {s(S_OUT)}, {s(S_T+1)}')
    p.e(f's_bfe_u32 {s(S_T)}, {s(S_W)}, 0x10001')
    p.e(f's_add_u32 {s(S_T+1)}, {s(S_ISV)}, 11')
    p.e(f's_lshl_b32 {s(S_T)}, {s(S_T)}, {s(S_T+1)}')
    p.e(f's_add_u32 {s(S_OUT)}, {s(S_OUT)}, {s(S_T)}')
    p.e(f's_lshr_b32 {s(S_OINC)}, 4096, {s(S_ISV)}')
    p.e(f's_lshl_b32 {s(S_OX)}, {s(S_ISV)}, 12')
    p.e(f's_lshl_b32 {s(S_T)}, {s(S_ISV)}, 24')
    p.e(f's_add_u32 {s(S_OUT)}, {s(S_OUT)}, {s(S_T)}')
    p.e(f's_add_u32 {s(S_OUT)}, {s(S_OUT)}, {WS_K}')
    p.e(f's_and_b32 {s(S_T)}, s2, 1')
    p.e(f's_lshl_b32 {s(S_T)}, {s(S_T)}, 2')
    p.e(f's_bfe_u32 {s(S_T+1)}, s2, 0x20003')
    p.e(f's_add_u32 {s(S_RB)}, {s(S_T)}, {s(S_T+1)}')
    p.e(f's_bfe_u32 {s(S_T)}, s2, 0x20001')
    p.e(f's_lshl_b32 {s(S_T)}, {s(S_T)}, 3')
    p.e(f's_lshr_b32 {s(S_T+1)}, s2, 5')
    p.e(f's_add_u32 {s(S_C2)}, {s(S_T)}, {s(S_T+1)}')
    dma_x_offs(p, V_DX2, 1280)
    B0, B1, B2, B3, LIM, STR = S_T + 2, S_T + 3, S_T + 4, S_T + 5, S_T + 6, S_T + 7
    p.e(f's_cmp_lt_u32 {s(S_C2)}, 22')
    p.e(f's_cselect_b32 {s(S_SX2)}, {s(ptr("B_x"))}, {s(ptr("A_x"))}')
    p.e(f's_cselect_b32 {s(S_SX2+1)}, {s(ptr("B_x")+1)}, {s(ptr("A_x")+1)}')
    p.e(f's_cselect_b32 {s(S_SW2)}, {s(ptr("B_w_q"))}, {s(ptr("A_wqkv"))}')
    p.e(f's_cselect_b32 {s(S_SW2+1)}, {s(ptr("B_w_q")+1)}, {s(ptr("A_wqkv")+1)}')
    p.e(f's_movk_i32 {s(STR)}, 3840')
    p.e(f's_cselect_b32 {s(STR)}, 8192, {s(STR)}')
    p.e(f's_cselect_b32 {s(S_T)}, 0, 22')
    p.e(f's_mul_i32 {s(S_SW2+2)}, {s(STR)}, 640')
    p.e(f's_add_u32 {s(S_SW2+2)}, {s(S_SW2+2)}, {ADJ}')
    p.e(f's_sub_u32 {s(S_SW2)}, {s(S_SW2)}, {ADJ}')
    p.e(f's_subb_u32 {s(S_SW2+1)}, {s(S_SW2+1)}, 0')
    p.e(f's_sub_u32 {s(S_T)}, {s(S_C2)}, {s(S_T)}')
    p.e(f's_mul_i32 {s(B0)}, {s(S_T)}, 384')
    p.e(f's_mov_b32 {s(B1)}, {s(B0)}')
    p.e(f's_mov_b32 {s(B2)}, {s(B0)}')
    p.e(f's_mov_b32 {s(B3)}, {s(B0)}')
    p.e(f's_cmp_eq_u32 {s(S_C2)}, 21')
    p.e(f's_cselect_b32 {s(LIM)}, 8, 24')
    p.e(f's_cmp_lt_u32 {s(S_C2)}, 24')
    p.e('s_cbranch_scc1 K1_NOTKV')
    p.e(f's_sub_u32 {s(S_T)}, {s(S_C2)}, 24')
    p.e(f's_mul_i32 {s(S_T+1)}, {s(S_T)}, 160')
    p.e(f's_add_u32 {s(B0)}, {s(S_T+1)}, 1280')
    p.e(f's_add_u32 {s(B2)}, {s(S_T+1)}, {2560-12*16}')
    p.e(f's_lshl_b32 {s(S_T+1)}, {s(S_T)}, 6')
    p.e(f's_add_u32 {s(B1)}, {s(S_T+1)}, {768-10*16}')
    p.e(f's_add_u32 {s(B3)}, {s(S_T+1)}, {768+32-22*16}')
    p.label('K1_NOTKV')
    p.e(f's_lshl_b32 {s(S_WINC2)}, {s(STR)}, 5')
    p.e(f'v_mul_lo_u32 {v(t+4)}, {v(t+8)}, {s(STR)}')
    p.e(f'v_add_u32 {v(t+4)}, {ADJ-2048}, {v(t+4)}')
    for par in range(2):
        c = t + 6 + par
        o = V_DW2 + par
        p.e(f'v_mov_b32 {v(o)}, {s(B3)}')
        for lim, B in ((22, B2), (12, B1), (10, B0)):
            p.e(f'v_mov_b32 {v(t)}, {s(B)}')
            p.e(f'v_cmp_gt_u32 vcc, {lim}, {v(c)}')
            p.e(f'v_cndmask_b32 {v(o)}, {v(o)}, {v(t)}, vcc')
        p.e(f'v_lshl_add_u32 {v(o)}, {v(c)}, 4, {v(o)}')
        p.e(f'v_add_u32 {v(o)}, {v(o)}, {v(t+4)}')
        p.e(f'v_mov_b32 {v(t)}, {OOB}')
        p.e(f'v_cmp_gt_u32 vcc, {s(LIM)}, {v(c)}')
        p.e(f'v_cndmask_b32 {v(o)}, {v(t)}, {v(o)}, vcc')
    p.e(f's_lshl_b32 {s(S_T)}, {s(STR)}, 1')
    p.e(f's_sub_u32 {s(S_T)}, {s(S_T)}, 1024')
    p.e(f'v_add_u32 {v(V_DW2+1)}, {s(S_T)}, {v(V_DW2+1)}')
    p.e(f'v_lshlrev_b32 {v(V_L16)}, 4, {v(V_LANE)}')
    p.ext(dma_lines())
    st_.stamp(1)
    p.e('s_waitcnt vmcnt(16)')
    p.e('s_barrier')
    st_.stamp(2)
    first_reads(p, 4)
    p.e(f's_mov_b32 {s(S_CNT)}, 0')
    p.e(f's_cmp_eq_u32 {s(S_ISV)}, 0')
    p.e('s_cbranch_scc0 K1_LOOPV')
    for orient, lab in ((0, 'K1_LOOPK'), (1, 'K1_LOOPV')):
        p.label(lab)
        stage(p, 0, 8, 4, orient, V_ACC)
        p.e(f's_cmp_lg_u32 {s(S_CNT)}, 5')
        p.e(f's_cbranch_scc1 {lab}_NS')
        for i in range(3):
            p.e(f's_mov_b32 {s(S_SW+i)}, {s(S_SW2+i)}')
        for i in range(2):
            p.e(f's_mov_b32 {s(S_SX+i)}, {s(S_SX2+i)}')
        p.e(f's_mov_b32 {s(S_SX+2)}, {2048*1280}')
        p.e(f's_mov_b32 {s(S_XOFF)}, 0')
        p.e(f's_mov_b32 {s(S_WOFF)}, 0')
        p.e(f's_mov_b32 {s(S_WINC)}, {s(S_WINC2)}')
        for i in range(4):
            p.e(f'v_mov_b32 {v(V_DX+i)}, {v(V_DX2+i)}')
        p.label(f'{lab}_NS')
        stage(p, 1, 8, 4, orient, V_ACC)
        p.e(f's_add_u32 {s(S_CNT)}, {s(S_CNT)}, 1')
        if stamps:
            p.e(f's_and_b32 s92, {s(S_CNT)}, 1')
            p.e(f's_cbranch_scc1 {lab}_NOST')
            p.e(f's_lshr_b32 s92, {s(S_CNT)}, 1')
            p.e(f's_add_u32 s92, s92, 2')
            st_.stamp_dyn(92)
            p.label(f'{lab}_NOST')
        p.e(f's_cmp_lt_u32 {s(S_CNT)}, 8')
        p.e(f's_cbranch_scc1 {lab}')
        if orient == 0:
            p.e('s_branch K1_EPI1')
    p.label('K1_EPI1')
    p.e(f's_and_b32 {s(S_T)}, {s(S_W)}, 3')
    p.e(f's_lshl_b32 {s(S_ROWB)}, {s(S_T)}, 6')
    p.e(f's_lshr_b32 {s(S_T)}, {s(S_W)}, 2')
    p.e(f's_mul_i32 {s(S_NTB)}, {s(S_T)}, 6')
    read_addrs(p, 6)
    first_reads(p, 6)
    if a2:
        srd(p, S_PHI, 'A_w_phi', 32 * 800)
        p.e(f's_sub_u32 {s(S_T)}, {s(S_C2)}, 24')
        p.e(f's_mul_i32 {s(S_T)}, {s(S_T)}, 3200')
        p.e(f's_cselect_b32 {s(S_PHI+2)}, 0, {s(S_PHI+2)}')
        p.e(f's_cselect_b32 {s(S_T)}, 0, {s(S_T)}')
        p.e(f's_mul_i32 {s(S_T+1)}, {s(S_W)}, 60')
        p.e(f'v_add_u32 {v(V_DW2)}, {s(S_T+1)}, {v(V_LANE)}')
        p.e(f'v_lshlrev_b32 {v(V_DW2+1)}, 3, {v(V_DW2)}')
        p.e(f'v_mov_b32 {v(V_ST)}, {OOB}')
        p.e(f'v_cmp_gt_u32 vcc, 400, {v(V_DW2)}')
        p.e(f'v_cndmask_b32 {v(V_DW2+1)}, {v(V_ST)}, {v(V_DW2+1)}, vcc')
        p.e(f'buffer_load_dwordx2 {v(V_DX2,2)}, {v(V_DW2+1)}, {s(S_PHI,4)}, {s(S_T)} offen')
    for i in range(64):
        p.e(f'v_cvt_pk_bf16_f32 {v(V_PK+i)}, {v(V_ACC+2*i)}, {v(V_ACC+2*i+1)}')
    for i in range(96):
        p.e(f'v_mov_b32 {v(V_ACC2+i)}, 0')
    p.e(f's_mov_b32 {s(S_CNT)}, 0')
    p.e(f's_mov_b32 {s(S_IDX)}, 0')
    st_.stamp(7)
    p.label('K1_LOOP2')

    def dstore(k):
        def f():
            if NOST:
                return
            p.e(f's_cmp_ge_u32 {s(S_CNT)}, 8')
            p.e(f's_cbranch_scc1 K1_NODS{k}')
            p.e(f's_set_gpr_idx_on {s(S_IDX)}, 0x1')
            for j in range(4):
                p.e(f'v_mov_b32 {v(V_ST+4*k+j)}, {v(V_PK+4*k+j)}')
            p.e('s_set_gpr_idx_off')
            p.e(f'buffer_store_dwordx4 {v(V_ST+4*k,4)}, {v(V_L16)}, {s(S_WS,4)}, {s(S_OUT)} offen offset:{1024*k}{SM}')
            if k == 1:
                p.e(f's_add_u32 {s(S_IDX)}, {s(S_IDX)}, 8')
                p.e(f's_add_u32 {s(S_OUT)}, {s(S_OUT)}, {s(S_OINC)}')
                p.e(f's_xor_b32 {s(S_OINC)}, {s(S_OINC)}, {s(S_OX)}')
            p.label(f'K1_NODS{k}')
        return f
    stage(p, 0, 4, 6, 0, V_ACC2, dstore(0))
    p.e(f's_cmp_lg_u32 {s(S_CNT)}, 7')
    p.e('s_cbranch_scc1 K1_LOOP2_NS')
    p.e(f's_mov_b32 {s(S_SX+2)}, 0')
    p.e(f's_mov_b32 {s(S_SW+2)}, 0')
    p.label('K1_LOOP2_NS')
    stage(p, 1, 4, 6, 0, V_ACC2, dstore(1))
    p.e(f's_add_u32 {s(S_CNT)}, {s(S_CNT)}, 1')
    if stamps:
        p.e(f's_and_b32 s92, {s(S_CNT)}, 1')
        p.e(f's_cbranch_scc1 K1_L2_NOST')
        p.e(f's_lshr_b32 s92, {s(S_CNT)}, 1')
        p.e(f's_add_u32 s92, s92, 7')
        st_.stamp_dyn(92)
        p.label(f'K1_L2_NOST')
    p.e(f's_cmp_lt_u32 {s(S_CNT)}, 10')
    p.e('s_cbranch_scc1 K1_LOOP2')
    p.e('s_waitcnt vmcnt(0)')
    p.e(f's_cmp_ge_u32 {s(S_C2)}, 22')
    p.e('s_cbranch_scc1 K1_EPIA')
    p.e(f's_mul_i32 {s(S_T)}, {s(S_C2)}, 6')
    p.e(f's_lshr_b32 {s(S_T+1)}, {s(S_NTB)}, 1')
    p.e(f's_add_u32 {s(S_T)}, {s(S_T)}, {s(S_T+1)}')
    p.e(f's_lshl_b32 {s(S_T+1)}, {s(S_RB)}, 16')
    p.e(f's_lshl_b32 {s(S_T+2)}, {s(S_ROWB)}, 8')
    p.e(f's_add_u32 {s(S_T+1)}, {s(S_T+1)}, {s(S_T+2)}')
    p.e(f's_mov_b32 {s(S_T+5)}, {f32hex(QSCALE)}')
    k = 0
    for a3 in range(3):
        p.e(f's_cmp_ge_u32 {s(S_T)}, 128')
        p.e('s_cbranch_scc1 K1_FIN')
        p.e(f's_lshr_b32 {s(S_T+2)}, {s(S_T)}, 2')
        p.e(f's_lshl_b32 {s(S_T+2)}, {s(S_T+2)}, 19')
        p.e(f's_and_b32 {s(S_T+3)}, {s(S_T)}, 3')
        p.e(f's_lshl_b32 {s(S_T+3)}, {s(S_T+3)}, 10')
        p.e(f's_add_u32 {s(S_T+2)}, {s(S_T+2)}, {s(S_T+3)}')
        p.e(f's_add_u32 {s(S_T+2)}, {s(S_T+2)}, {s(S_T+1)}')
        for st in range(4):
            a = V_ACC2 + 4 * (st * 6 + 2 * a3)
            d = V_XF + 4 * (k % 12)
            k += 1
            for j in range(8):
                p.e(f'v_mul_f32 {v(a+j)}, {s(S_T+5)}, {v(a+j)}')
            for j in range(4):
                p.e(f'v_cvt_pk_bf16_f32 {v(d+j)}, {v(a+2*j)}, {v(a+2*j+1)}')
            if NOST < 2:
                p.e(f'buffer_store_dwordx4 {v(d,4)}, {v(V_L16)}, {s(S_WS,4)}, {s(S_T+2)} offen{SM}')
            if st < 3:
                p.e(f's_add_u32 {s(S_T+2)}, {s(S_T+2)}, 4096')
        p.e(f's_add_u32 {s(S_T)}, {s(S_T)}, 1')
    p.e('s_branch K1_FIN')
    p.label('K1_EPIA')
    p.e(f'v_lshrrev_b32 {v(3)}, 4, {v(V_LANE)}')
    p.e(f'v_lshlrev_b32 {v(3)}, 14, {v(3)}')
    p.e(f'v_and_b32 {v(4)}, 15, {v(V_LANE)}')
    p.e(f'v_lshl_add_u32 {v(3)}, {v(4)}, 3, {v(3)}')
    p.e(f's_lshl_b32 {s(S_T+1)}, {s(S_RB)}, 11')
    p.e(f's_lshl_b32 {s(S_T+2)}, {s(S_ROWB)}, 3')
    p.e(f's_add_u32 {s(S_T+1)}, {s(S_T+1)}, {s(S_T+2)}')
    p.e(f's_add_u32 {s(S_T+1)}, {s(S_T+1)}, {WS_QA}')
    p.e(f's_cmp_ge_u32 {s(S_C2)}, 24')
    p.e('s_cbranch_scc1 K1_EPIKV')
    p.e(f's_sub_u32 {s(S_T)}, {s(S_C2)}, 22')
    p.e(f's_mul_i32 {s(S_T)}, {s(S_T)}, 48')
    p.e(f's_lshl_b32 {s(S_T+2)}, {s(S_NTB)}, 2')
    p.e(f's_add_u32 {s(S_T)}, {s(S_T)}, {s(S_T+2)}')
    p.e(f's_lshl_b32 {s(S_T)}, {s(S_T)}, 14')
    p.e(f's_add_u32 {s(S_T)}, {s(S_T)}, {s(S_T+1)}')
    k = 0

    def qstore(nt):
        nonlocal k
        for st in range(4):
            a = V_ACC2 + 4 * (st * 6 + nt)
            d = V_XF + 2 * (k % 24)
            k += 1
            for j in range(2):
                p.e(f'v_cvt_pk_bf16_f32 {v(d+j)}, {v(a+2*j)}, {v(a+2*j+1)}')
            p.e(f'buffer_store_dwordx2 {v(d,2)}, {v(3)}, {s(S_WS,4)}, {s(S_T)} offen offset:{st*128}')
    for nt in range(6):
        qstore(nt)
        p.e(f's_add_u32 {s(S_T)}, {s(S_T)}, 65536')
    p.e('s_branch K1_FIN')
    p.label('K1_EPIKV')
    p.e(f's_sub_u32 {s(S_T)}, {s(S_C2)}, 24')
    p.e(f's_lshl_b32 {s(S_T)}, {s(S_T)}, 3')
    p.e(f's_and_b32 {s(S_T+2)}, {s(S_W)}, 4')
    p.e(f's_add_u32 {s(S_T)}, {s(S_T)}, {s(S_T+2)}')
    p.e(f's_add_u32 {s(S_T)}, {s(S_T)}, 96')
    p.e(f's_lshl_b32 {s(S_T)}, {s(S_T)}, 14')
    p.e(f's_add_u32 {s(S_T)}, {s(S_T)}, {s(S_T+1)}')
    qstore(5)
    if a2:
        import k1a2
        k1a2.emit(p, globals())
    p.label('K1_FIN')
    st_.stamp(13)
    st_.flush(S_WS, S_W, WS_STAMP, 14, 6)
    p.label('K1_END')
    p.e('s_endpgm')
    p.finalize()
    return p
```

```python
from asmlib import *
from layout import *
import struct

L_M = 0
L_V = 16384
L_PHI = 59392
VSTR = 168
PSTR = 328


def f32hex(x):
    return '0x%08x' % struct.unpack('<I', struct.pack('<f', x))[0]


def softmax2(p, P, E, T, sL, out):
    mx, mn = T, T + 2
    p.e(f'v_max3_f32 {v(mx)}, {v(P)}, {v(P+1)}, {v(P+2)}')
    p.e(f'v_min3_f32 {v(mn)}, {v(P)}, {v(P+1)}, {v(P+2)}')
    for i in range(3, 19, 2):
        p.e(f'v_max3_f32 {v(mx)}, {v(mx)}, {v(P+i)}, {v(P+i+1)}')
        p.e(f'v_min3_f32 {v(mn)}, {v(mn)}, {v(P+i)}, {v(P+i+1)}')
    p.e(f'v_max_f32 {v(mx)}, {v(mx)}, {v(P+19)}')
    p.e(f'v_min_f32 {v(mn)}, {v(mn)}, {v(P+19)}')
    p.e(f'v_mul_f32 {v(mx)}, {s(sL)}, {v(mx)}')
    p.e(f'v_mul_f32 {v(mn)}, {s(sL)}, {v(mn)}')
    for i in range(0, 20, 2):
        p.e(f'v_pk_fma_f32 {v(E+i,2)}, {v(P+i,2)}, {s(sL,2)}, {v(mx,2)} op_sel_hi:[1,1,0] neg_lo:[0,0,1] neg_hi:[0,0,1]')
        p.e(f'v_pk_fma_f32 {v(P+i,2)}, {v(P+i,2)}, {s(sL,2)}, {v(mn,2)} op_sel_hi:[1,1,0] neg_lo:[1,0,0] neg_hi:[1,0,0]')
    for i in range(20):
        p.e(f'v_exp_f32 {v(E+i)}, {v(E+i)}')
        p.e(f'v_exp_f32 {v(P+i)}, {v(P+i)}')
    p.e(f'v_pk_add_f32 {v(mx,2)}, {v(E,2)}, {v(E+2,2)}')
    p.e(f'v_pk_add_f32 {v(mn,2)}, {v(P,2)}, {v(P+2,2)}')
    for i in range(4, 20, 2):
        p.e(f'v_pk_add_f32 {v(mx,2)}, {v(mx,2)}, {v(E+i,2)}')
        p.e(f'v_pk_add_f32 {v(mn,2)}, {v(mn,2)}, {v(P+i,2)}')
    p.e(f'v_add_f32 {v(mx)}, {v(mx)}, {v(mx+1)}')
    p.e(f'v_add_f32 {v(mn)}, {v(mn)}, {v(mn+1)}')
    p.e(f'v_rcp_f32 {v(mx)}, {v(mx)}')
    p.e(f'v_rcp_f32 {v(mn)}, {v(mn)}')
    for i in range(0, 20, 2):
        p.e(f'v_pk_mul_f32 {v(E+i,2)}, {v(E+i,2)}, {v(mx,2)} op_sel_hi:[1,0]')
        p.e(f'v_pk_mul_f32 {v(P+i,2)}, {v(P+i,2)}, {v(mn,2)} op_sel_hi:[1,0]')
    for i in range(10):
        p.e(f'v_cvt_pk_bf16_f32 {v(out+i)}, {v(E+2*i)}, {v(E+2*i+1)}')
    for i in range(10):
        p.e(f'v_cvt_pk_bf16_f32 {v(out+10+i)}, {v(P+2*i)}, {v(P+2*i+1)}')


def emit(p, G):
    g = type('G', (), G)
    V_LANE, V_L16, V_ACC2, S_W, S_T, S_WS = g.V_LANE, g.V_L16, g.V_ACC2, g.S_W, g.S_T, g.S_WS
    t = 8
    E_ = g.V_DW2
    p.e('s_barrier')
    p.e(f'v_mul_u32_u24 {v(t)}, 52429, {v(E_)}')
    p.e(f'v_lshrrev_b32 {v(t)}, 18, {v(t)}')
    p.e(f'v_mul_u32_u24 {v(t+1)}, 205, {v(t)}')
    p.e(f'v_lshrrev_b32 {v(t+1)}, 12, {v(t+1)}')
    p.e(f'v_mul_u32_u24 {v(t)}, 120, {v(t)}')
    p.e(f'v_mad_u32_u24 {v(t)}, 40, {v(t+1)}, {v(t)}')
    p.e(f'v_lshl_add_u32 {v(t)}, {v(E_)}, 3, {v(t)}')
    p.e(f'v_lshlrev_b32 {v(t+1)}, 5, {v(E_)}')
    for i in range(4):
        p.e(f'v_mov_b32 {v(t+4+i)}, 0')
    p.e('s_mov_b32 exec_hi, 0x0fffffff')
    p.e(f'ds_write_b128 {v(t+1)}, {v(t+4,4)} offset:{L_M}')
    p.e(f'ds_write_b128 {v(t+1)}, {v(t+4,4)} offset:{L_M+16}')
    p.e(f'ds_write_b64 {v(t)}, {v(g.V_DX2,2)} offset:{L_M}')
    p.e('s_mov_b32 exec_hi, -1')
    p.e(f'v_and_b32 {v(t+2)}, 15, {v(V_LANE)}')
    p.e(f'v_add_u32 {v(t+2)}, {s(g.S_ROWB)}, {v(t+2)}')
    p.e(f'v_lshrrev_b32 {v(t+3)}, 4, {v(V_LANE)}')
    B = 24
    for st in range(4):
        for i in range(12):
            a = V_ACC2 + 24 * st + 2 * i
            p.e(f'v_cvt_pk_bf16_f32 {v(B+12*st+i)}, {v(a)}, {v(a+1)}')
    p.e(f's_cmp_lt_u32 {s(S_W)}, 4')
    p.e('s_cbranch_scc1 A2_KW')
    p.e(f'v_mul_u32_u24 {v(t)}, {VSTR}, {v(t+2)}')
    p.e(f'v_lshl_add_u32 {v(t+1)}, {v(t+3)}, 3, {v(t)}')
    p.e(f'v_mov_b32 {v(t+4)}, 0x3f803f80')
    p.e(f'v_mov_b32 {v(t+5)}, 0x3f803f80')
    for st in range(4):
        for nt in range(5):
            p.e(f'ds_write_b64 {v(t+1)}, {v(B+12*st+2*nt,2)} offset:{L_V+st*16*VSTR+32*nt}')
        p.e(f'ds_write_b64 {v(t)}, {v(t+4,2)} offset:{L_V+st*16*VSTR+160}')
    p.e('s_waitcnt lgkmcnt(0)')
    p.e('s_barrier')
    p.e('s_branch A2_S2')
    p.label('A2_KW')
    p.e(f'v_lshrrev_b32 {v(t)}, 2, {v(V_LANE)}')
    p.e(f'v_mul_u32_u24 {v(t)}, 160, {v(t)}')
    p.e(f'v_and_b32 {v(t+1)}, 3, {v(V_LANE)}')
    p.e(f'v_mad_u32_u24 {v(t)}, 40, {v(t+1)}, {v(t)}')
    p.e(f'v_mul_u32_u24 {v(t+1)}, {PSTR}, {v(t+2)}')
    p.e(f'v_mov_b32 {v(t+4)}, 80')
    p.e(f'v_mad_u32_u24 {v(t+1)}, {v(t+4)}, {v(t+3)}, {v(t+1)}')
    p.e(f'v_add_u32 {v(t+1)}, {L_PHI}, {v(t+1)}')
    sL = S_T + 2
    p.e(f's_mov_b32 {s(sL)}, {f32hex(1.4426950408889634)}')
    p.e(f's_mov_b32 {s(sL+1)}, {s(sL)}')
    p.e('s_waitcnt lgkmcnt(0)')
    p.e('s_barrier')
    MF = 72
    for tt in range(5):
        for a in range(3):
            for j in range(2):
                p.e(f'ds_read_b64_tr_b16 {v(MF+4*(3*tt+a)+2*j,2)}, {v(t)} offset:{L_M+(32*a+16*j)*160+8*tt}')

    def mm(st):
        for tt in range(5):
            for a in range(3):
                d = v(V_ACC2 + 20 * st + 4 * tt, 4)
                p.e(f'v_mfma_f32_16x16x32_bf16 {d}, {v(MF+4*(3*tt+a),4)}, {v(B+12*st+4*a,4)}, {d if a else 0}')

    def sm(st):
        out = 236 if st < 3 else 24
        softmax2(p, V_ACC2 + 20 * st, 132, 152, sL, out)
        for i in range(10):
            p.e(f'ds_write_b64 {v(t+1)}, {v(out+2*i,2)} offset:{st*16*PSTR+8*i}')
    mm(0); mm(1); sm(0); mm(2); sm(1); sm(2); mm(3); sm(3)
    p.label('A2_S2')
    p.e(f'v_bfe_u32 {v(t)}, {v(V_LANE)}, 2, 2')
    p.e(f'v_lshrrev_b32 {v(t+2)}, 5, {v(V_LANE)}')
    p.e(f'v_lshl_add_u32 {v(t)}, {v(t+2)}, 3, {v(t)}')
    p.e(f'v_bfe_u32 {v(t+2)}, {v(V_LANE)}, 4, 1')
    p.e(f'v_and_b32 {v(t+3)}, 3, {v(V_LANE)}')
    p.e(f'v_lshl_add_u32 {v(t+2)}, {v(t+2)}, 2, {v(t+3)}')
    p.e(f'v_min_u32 {v(t+3)}, 4, {v(t+2)}')
    p.e(f's_mul_i32 {s(S_T)}, {s(S_W)}, 40')
    p.e(f's_add_u32 {s(S_T)}, {s(S_T)}, {L_PHI}')
    p.e(f'v_mul_u32_u24 {v(t+4)}, {PSTR}, {v(t)}')
    p.e(f'v_lshl_add_u32 {v(t+4)}, {v(t+3)}, 3, {v(t+4)}')
    p.e(f'v_add_u32 {v(t+4)}, {s(S_T)}, {v(t+4)}')
    p.e(f'v_add_u32 {v(t+5)}, {128*PSTR}, {v(t+4)}')
    p.e(f's_lshr_b32 {s(S_T)}, {s(S_W)}, 1')
    p.e(f's_mul_i32 {s(S_T)}, {s(S_T)}, 40')
    p.e(f'v_lshlrev_b32 {v(t+3)}, 3, {v(t+3)}')
    p.e(f'v_add_u32 {v(t+3)}, {s(S_T)}, {v(t+3)}')
    p.e(f'v_mov_b32 {v(t+6)}, 160')
    p.e(f'v_cmp_lt_u32 vcc, 4, {v(t+2)}')
    p.e(f'v_cndmask_b32 {v(t+3)}, {v(t+3)}, {v(t+6)}, vcc')
    p.e(f'v_mul_u32_u24 {v(t+6)}, {VSTR}, {v(t)}')
    p.e(f'v_add_u32 {v(t+6)}, {v(t+6)}, {v(t+3)}')
    p.e(f's_sub_u32 {s(S_T)}, {s(g.S_C2)}, 24')
    p.e(f's_lshl_b32 {s(S_T)}, {s(S_T)}, 3')
    p.e(f's_add_u32 {s(S_T)}, {s(S_T)}, {s(S_W)}')
    p.e(f's_lshl_b32 {s(S_T+1)}, {s(g.S_RB)}, 6')
    p.e(f's_add_u32 {s(S_T)}, {s(S_T)}, {s(S_T+1)}')
    p.e(f's_mul_i32 {s(S_T)}, {s(S_T)}, 3072')
    p.e(f's_add_u32 {s(S_T)}, {s(S_T)}, {WS_KVP}')
    p.e('s_waitcnt lgkmcnt(0)')
    p.e('s_barrier')
    F = 64
    D = v(48, 16)

    def rd(k):
        for j in range(2):
            p.e(f'ds_read_b64_tr_b16 {v(F+8*k+2*j,2)}, {v(t+4+(k>>3))} offset:{(16*(k&7)+4*j)*PSTR}')
        for j in range(2):
            p.e(f'ds_read_b64_tr_b16 {v(F+8*k+4+2*j,2)}, {v(t+6)} offset:{L_V+(16*k+4*j)*VSTR}')
    for k in range(3):
        rd(k)
    for k in range(16):
        if k + 3 < 16:
            rd(k + 3)
        p.e(f'v_mfma_f32_32x32x16_bf16 {D}, {v(F+8*k,4)}, {v(F+8*k+4,4)}, {D if k else 0}')
    for i in range(3):
        p.e(f'buffer_store_dwordx4 {v(48+4*i,4)}, {v(V_L16)}, {s(S_WS,4)}, {s(S_T)} offen offset:{1024*i}')
```

```python
from asmlib import *
from layout import *
import struct, os


def f32hex(x):
    return '0x%08x' % struct.unpack('<I', struct.pack('<f', x))[0]


V_LANE = 1
V_L16 = 2
V_DMA = 3
V_KA = 4
V_VA = 5
V_LA = 8
V_LB = 10
V_T = 12
V_NM = 16
V_E = 24
V_PA = 32
V_PB = 40
V_SA = 48
V_SB = 64
V_Q = 80
V_FA = 112
V_FB = 144
V_O = 176
V_X = 240

S_W = 3
S_H = 4
S_I = 5
S_G = 6
S_WQ = 7
S_PTR = 8
S_WS = 36
S_SK = 40
S_SV = 44
S_A = 48
S_N = 52
S_TT = 53
S_KOFF = 54
S_VOFF = 55
S_LIM = 56
S_D = 57
S_DN = 58
S_ALT = 59
S_Q0 = 60
S_Q1 = 61
S_TR = 62
S_THR = 63
S_THRE = 64
S_FLOOR = 65
S_MK = 66
S_MV = 67
S_LIM2 = 68
S_CO = 69
S_CO1 = 70
S_NINF = 71
S_MSK = 72
S_T = 80

L_K = 0
L_V = 65536
L_Q = 131072
L_WFB = 98304
L_WFA = 122880
L_KVF = 147456
L_WI = 150528
OOB = 0x7FF00000
THR = 2.0 ** 100


def ptr(name):
    return S_PTR + KA[name] // 4


def O(dt, qt):
    return V_O + 4 * (((dt >> 1) * 2 + qt) * 2 + (dt & 1))


def pv(P):
    return [f'v_mfma_f32_16x16x32_bf16 {v(O(dt,qt),4)}, {v(V_FA+4*dt,4)}, {v(P+4*qt,4)}, {v(O(dt,qt),4)}'
            for dt in range(8) for qt in range(2)]


def qk(S, F=V_FB):
    L = []
    for kt in range(2):
        for ds in range(4):
            for qt in range(2):
                d = v(S + 4 * (2 * kt + qt), 4)
                c = d if ds else v(V_NM + 4 * qt, 4)
                L.append(f'v_mfma_f32_16x16x32_bf16 {d}, {v(F+4*(4*kt+ds),4)}, {v(V_Q+4*(4*qt+ds),4)}, {c}')
    return L


def kreads(a, F=V_FB):
    return [f'ds_read_b128 {v(F+4*j,4)}, {v(V_KA)} offset:{a*8192+j*1024}' for j in range(8)]


def vreads(a):
    return [f'ds_read_b128 {v(V_FA+4*j,4)}, {v(V_VA)} offset:{a*8192+j*1024}' for j in range(8)]


def sm_list(S, P, lold, lnew, thr):
    blocks = [(kt, qt) for kt in range(2) for qt in range(2)]
    ex, post = [], []
    for b, (kt, qt) in enumerate(blocks):
        E = V_E + 4 * (b & 1)
        src = S + 4 * (2 * kt + qt)
        ex.append([(f'v_exp_f32 {v(E+r)}, {v(src+r)}', 8) for r in range(4)])
        q = []
        for r in range(4):
            a = lold + qt if (kt == 0 and r == 0) else lnew + qt
            q.append((f'v_add_f32 {v(lnew+qt)}, {v(a)}, {v(E+r)}', 4))
            if r & 1:
                q.append((f'v_cvt_pk_bf16_f32 {v(P+4*qt+2*kt+(r>>1))}, {v(E+r-1)}, {v(E+r)}', 4))
        post.append(q)
    L = list(ex[0])
    for b in range(4):
        nx = ex[b + 1] if b < 3 else []
        q = post[b]
        order = [q[0], 0, q[1], q[2], 1, q[3], 2, q[4], q[5], 3]
        for o in order:
            if isinstance(o, int):
                if nx:
                    L.append(nx[o])
            else:
                L.append(o)
    if thr is not None:
        L.append((f'v_max_f32 {v(V_T)}, {v(lnew)}, {v(lnew+1)}', 4))
        L.append((f'v_cmp_lt_f32 vcc, {s(thr)}, {v(V_T)}', 4))
    return L


def spread(L, n, start, end):
    tot = sum(c for _, c in L)
    slots = [[] for _ in range(n)]
    acc = 0
    for ins, c in L:
        k = start + int((acc + c / 2) * (end - start) / tot)
        slots[min(k, end - 1)].append(ins)
        acc += c
    return slots


def dma_tile(p, off, lim, srd, mbase, lab):
    p.e(f's_cmp_lt_u32 {s(off)}, {s(lim)}')
    p.e(f's_cbranch_scc0 {lab}')
    p.e(f's_and_b32 {s(S_T)}, {s(off)}, 0xc000')
    p.e(f's_add_u32 m0, {s(S_T)}, {s(mbase)}')
    p.e(f's_add_u32 {s(S_T+1)}, {s(off)}, 16384')
    p.e(f'buffer_load_dwordx4 {v(V_DMA)}, {s(srd,4)}, {s(off)} offen lds')
    p.e(f'buffer_load_dwordx4 {v(V_DMA)}, {s(srd,4)}, {s(off)} offen offset:1024 lds')
    p.e(f's_mov_b32 {s(off)}, {s(S_T+1)}')
    p.label(lab)


def dma_tile_u(p, off, srd, mbase):
    p.e(f's_and_b32 {s(S_T)}, {s(off)}, 0xc000')
    p.e(f's_add_u32 m0, {s(S_T)}, {s(mbase)}')
    p.e(f's_add_u32 {s(S_T+1)}, {s(off)}, 16384')
    p.e(f'buffer_load_dwordx4 {v(V_DMA)}, {s(srd,4)}, {s(off)} offen lds')
    p.e(f'buffer_load_dwordx4 {v(V_DMA)}, {s(srd,4)}, {s(off)} offen offset:1024 lds')
    p.e(f's_mov_b32 {s(off)}, {s(S_T+1)}')


def xreduce(p, op, regs, tmps):
    for sw in ('v_permlane16_swap_b32', 'v_permlane32_swap_b32'):
        for r, t in zip(regs, tmps):
            p.e(f'v_mov_b32 {v(t)}, {v(r)}')
        for r, t in zip(regs, tmps):
            p.e(f'{sw} {v(r)}, {v(t)}')
        for r, t in zip(regs, tmps):
            p.e(f'{op} {v(r)}, {v(r)}, {v(t)}')


def mask_block(p, S, lab, ret, dadj):
    p.label(lab)
    p.e(f's_cmp_eq_i32 {s(S_D)}, {-dadj}')
    p.e(f's_cbranch_scc1 {lab}_DG')
    for i in range(16):
        p.e(f'v_mov_b32 {v(S+i)}, {s(S_NINF)}')
    p.e(f's_branch {ret}')
    p.label(f'{lab}_DG')
    p.e(f'v_mov_b32 {v(V_T)}, {s(S_NINF)}')
    for r in range(4):
        p.e(f'v_cndmask_b32 {v(S+r)}, {v(S+r)}, {v(V_T)}, {s(S_MSK+2*r,2)}')
    for r in range(4):
        p.e(f'v_mov_b32 {v(S+8+r)}, {s(S_NINF)}')
    for r in range(4):
        p.e(f'v_cndmask_b32 {v(S+12+r)}, {v(S+12+r)}, {v(V_T)}, {s(S_MSK+2*r,2)}')
    p.e(f's_branch {ret}')


def slow_core(p, cur, nxt, P, lold, lnew, lab):
    mx = [V_T, V_T + 1]
    tm = [V_T + 2, V_T + 3]
    for qt in range(2):
        r = [cur + 4 * qt + i for i in range(4)] + [cur + 8 + 4 * qt + i for i in range(4)]
        p.e(f'v_max3_f32 {v(mx[qt])}, {v(r[0])}, {v(r[1])}, {v(r[2])}')
        p.e(f'v_max3_f32 {v(mx[qt])}, {v(mx[qt])}, {v(r[3])}, {v(r[4])}')
        p.e(f'v_max3_f32 {v(mx[qt])}, {v(mx[qt])}, {v(r[5])}, {v(r[6])}')
        p.e(f'v_max3_f32 {v(mx[qt])}, {v(mx[qt])}, {v(r[7])}, {s(S_FLOOR)}')
    xreduce(p, 'v_max_f32', mx, tm)
    for qt in range(2):
        for i in range(4):
            p.e(f'v_sub_f32 {v(V_NM+4*qt+i)}, {v(V_NM+4*qt+i)}, {v(mx[qt])}')
        for S in (cur, nxt):
            for kt in range(2):
                for i in range(4):
                    r = S + 8 * kt + 4 * qt + i
                    p.e(f'v_sub_f32 {v(r)}, {v(r)}, {v(mx[qt])}')
    p.e(f's_cmp_lg_u32 {s(S_FLOOR)}, 0')
    p.e(f's_cbranch_scc1 {lab}_NR')
    for qt in range(2):
        p.e(f'v_exp_f32 {v(tm[qt])}, -{v(mx[qt])}')
    for qt in range(2):
        p.e(f'v_mul_f32 {v(lold+qt)}, {v(lold+qt)}, {v(tm[qt])}')
        for dt in range(8):
            for i in range(4):
                r = O(dt, qt) + i
                p.e(f'v_mul_f32 {v(r)}, {v(r)}, {v(tm[qt])}')
    p.label(f'{lab}_NR')
    for ins, _ in sm_list(cur, P, lold, lnew, None):
        p.e(ins)
    p.e(f's_mov_b32 {s(S_FLOOR)}, 0')


def emit_groups(p, main, *slotlists):
    for i, m in enumerate(main):
        p.e(m)
        for sl in slotlists:
            for x in sl[i]:
                if callable(x):
                    x()
                else:
                    p.e(x)


def prologue_a(p, st_):
    pass


def build(name='k2_kernel', stamps=False):
    p = Prog()
    st_ = Stamps(p, 7, 90, stamps)
    p.e('s_cmp_ge_u32 s2, 256')
    p.e('s_cbranch_scc1 K2_END')
    st_.start()
    p.e(f's_load_dwordx4 {s(S_PTR+4,4)}, s[0:1], 16')
    p.e(f's_load_dwordx2 {s(ptr("B_w_o"),2)}, s[0:1], 72')
    p.e(f's_load_dwordx2 {s(ptr("ws"),2)}, s[0:1], 96')
    if int(os.environ.get('PF', '3')) & 4:
        code_prefetch(p, 6, 5, S_A, 'k2_kernel', 'K2_END', 'K2')
    p.e(f'v_lshrrev_b32 {v(2)}, 6, v0')
    p.e(f'v_and_b32 {v(V_LANE)}, 63, v0')
    p.e(f'v_readfirstlane_b32 {s(S_W)}, {v(2)}')
    p.e(f'v_lshlrev_b32 {v(V_L16)}, 4, {v(V_LANE)}')
    p.e(f's_and_b32 {s(S_T)}, s2, 7')
    p.e(f's_lshl_b32 {s(S_T)}, {s(S_T)}, 2')
    p.e(f's_bfe_u32 {s(S_H)}, s2, 0x20003')
    p.e(f's_add_u32 {s(S_H)}, {s(S_H)}, {s(S_T)}')
    p.e(f's_lshr_b32 {s(S_I)}, s2, 5')
    p.e(f's_lshr_b32 {s(S_G)}, {s(S_W)}, 2')
    p.e(f's_and_b32 {s(S_WQ)}, {s(S_W)}, 3')
    p.e(f's_lshl_b32 {s(S_MK)}, {s(S_W)}, 11')
    p.e(f's_add_u32 {s(S_MV)}, {s(S_MK)}, {L_V}')
    p.e(f'v_add_u32 {v(V_DMA)}, {s(S_MK)}, {v(V_L16)}')
    p.e(f's_lshl_b32 {s(S_TT)}, {s(S_I)}, 1')
    p.e(f's_sub_u32 {s(S_LIM)}, 32, {s(S_TT)}')
    p.e(f's_lshl_b32 {s(S_LIM)}, {s(S_LIM)}, 14')
    p.e(f's_add_u32 {s(S_TT)}, {s(S_TT)}, 2')
    p.e(f's_lshl_b32 {s(S_T)}, {s(S_I)}, 2')
    p.e(f's_add_u32 {s(S_Q0)}, {s(S_T)}, {s(S_WQ)}')
    p.e(f's_sub_u32 {s(S_Q1)}, 60, {s(S_T)}')
    p.e(f's_add_u32 {s(S_Q1)}, {s(S_Q1)}, {s(S_WQ)}')
    p.e(f's_sub_u32 {s(S_TR)}, {s(S_TT)}, 1')
    p.e(f's_cmp_eq_u32 {s(S_G)}, 0')
    p.e(f's_cselect_b32 {s(S_Q0)}, {s(S_Q0)}, {s(S_Q1)}')
    p.e(f's_cselect_b32 {s(S_TR)}, {s(S_TR)}, 99')
    p.e(f's_sub_u32 {s(S_ALT)}, {s(S_G)}, {s(S_TT)}')
    p.e(f's_mov_b32 {s(S_KOFF)}, 0')
    p.e(f's_mov_b32 {s(S_VOFF)}, 0')
    p.e(f's_lshl_b32 {s(S_T+2)}, {s(S_H)}, 19')
    for r in (S_WS, S_SK, S_SV, S_A):
        p.e(f's_mov_b32 {s(r+3)}, 0x00020000')
    p.e(f's_mov_b32 {s(S_WS+2)}, {WS_SIZE}')
    p.e(f's_mov_b32 {s(S_SK+2)}, 0x80000')
    p.e(f's_mov_b32 {s(S_SV+2)}, 0x80000')
    p.e(f's_add_u32 {s(S_T+3)}, {s(S_T+2)}, {WS_K}')
    p.e(f's_add_u32 {s(S_T+4)}, {s(S_T+2)}, {WS_V}')
    p.e('s_waitcnt lgkmcnt(0)')
    p.e(f's_mov_b32 {s(S_WS)}, {s(ptr("ws"))}')
    p.e(f's_mov_b32 {s(S_WS+1)}, {s(ptr("ws")+1)}')
    p.e(f's_add_u32 {s(S_SK)}, {s(ptr("ws"))}, {s(S_T+3)}')
    p.e(f's_addc_u32 {s(S_SK+1)}, {s(ptr("ws")+1)}, 0')
    p.e(f's_add_u32 {s(S_SV)}, {s(ptr("ws"))}, {s(S_T+4)}')
    p.e(f's_addc_u32 {s(S_SV+1)}, {s(ptr("ws")+1)}, 0')
    import k2a
    k2a.loads(p, globals())
    dma_tile_u(p, S_KOFF, S_SK, S_MK)
    p.e(f's_lshl_b32 {s(S_T+3)}, {s(S_Q0)}, 13')
    p.e(f's_add_u32 {s(S_T+3)}, {s(S_T+3)}, {s(S_T+2)}')
    p.e(f's_add_u32 {s(S_T+4)}, {s(S_T+3)}, 4096')
    for qt in range(2):
        for ds in range(4):
            p.e(f'buffer_load_dwordx4 {v(V_Q+4*(4*qt+ds),4)}, {v(V_L16)}, {s(S_WS,4)}, {s(S_T+3+qt)} offen offset:{ds*1024}')
    dma_tile_u(p, S_VOFF, S_SV, S_MV)
    dma_tile_u(p, S_KOFF, S_SK, S_MK)
    dma_tile_u(p, S_VOFF, S_SV, S_MV)
    dma_tile_u(p, S_KOFF, S_SK, S_MK)
    dma_tile_u(p, S_KOFF, S_SK, S_MK)
    for q, o in ((S_Q0, S_CO), (S_Q1, S_CO1)):
        p.e(f's_lshr_b32 {s(S_T)}, {s(q)}, 1')
        p.e(f's_mul_i32 {s(o)}, {s(S_T)}, {NSTEP*4096}')
        p.e(f's_and_b32 {s(S_T)}, {s(q)}, 1')
        p.e(f's_lshl_b32 {s(S_T)}, {s(S_T)}, 11')
        p.e(f's_add_u32 {s(o)}, {s(o)}, {s(S_T)}')
        p.e(f's_add_u32 {s(o)}, {s(o)}, {WS_CTX}')
    p.e(f's_mov_b32 {s(S_THR)}, {f32hex(THR)}')
    p.e(f's_mov_b32 {s(S_THRE)}, {s(S_THR)}')
    p.e(f's_mov_b32 {s(S_NINF)}, 0xff800000')
    p.e(f's_mov_b32 {s(S_FLOOR)}, 0xff800000')
    p.e(f'v_lshrrev_b32 {v(V_T)}, 4, {v(V_LANE)}')
    p.e(f'v_lshlrev_b32 {v(V_T)}, 2, {v(V_T)}')
    p.e(f'v_and_b32 {v(V_T+1)}, 15, {v(V_LANE)}')
    p.e(f'v_sub_u32 {v(V_T)}, {v(V_T+1)}, {v(V_T)}')
    for r in range(4):
        p.e(f'v_cmp_gt_i32 {s(S_MSK+2*r,2)}, {r}, {v(V_T)}')
    for i in range(64):
        p.e(f'v_mov_b32 {v(V_O+i)}, 0')
    for i in range(8):
        p.e(f'v_mov_b32 {v(V_NM+i)}, 0')
    for i in range(2):
        p.e(f'v_mov_b32 {v(V_LB+i)}, 0')
    p.e(f'v_mov_b32 {v(V_KA)}, {v(V_L16)}')
    p.e(f'v_add_u32 {v(V_VA)}, {L_V}, {v(V_L16)}')
    st_.stamp(1)
    nst = k2a.compute(p, globals(), st_)
    p.e(f's_lshl_b32 {s(S_T)}, {s(S_H)}, 14')
    p.e(f's_add_u32 {s(S_CO)}, {s(S_CO)}, {s(S_T)}')
    p.e(f's_add_u32 {s(S_CO1)}, {s(S_CO1)}, {s(S_T)}')
    st_.stamp(4)
    p.ext(kreads(0, V_FA))
    p.ext(kreads(1, V_FB))
    p.ext(qk(V_SA, V_FA))
    q1 = qk(V_SB, V_FB)
    p.ext(q1[:8])
    p.e(f's_mov_b32 {s(S_N)}, 0')
    p.e(f's_sub_u32 {s(S_D)}, 0, {s(S_Q0)}')
    p.e(f's_add_u32 {s(S_DN)}, {s(S_D)}, 2')
    p.e(f's_waitcnt vmcnt({nst}) lgkmcnt(0)')
    p.e('s_barrier')
    p.ext(vreads(0))
    p.e(f'v_add_u32 {v(V_KA)}, 16384, {v(V_L16)}')
    p.ext(q1[8:12])
    p.e(f's_lshl_b32 {s(S_T)}, {s(S_MK)}, 1')
    p.e(f's_add_u32 m0, {s(S_T)}, {L_Q}')
    p.e(f's_sub_u32 {s(S_T+1)}, 15, {s(S_I)}')
    p.e(f's_lshl_b32 {s(S_T+1)}, {s(S_T+1)}, 15')
    p.e(f's_lshl_b32 {s(S_T+2)}, {s(S_H)}, 19')
    p.e(f's_add_u32 {s(S_T+1)}, {s(S_T+1)}, {s(S_T+2)}')
    p.e(f's_add_u32 {s(S_T+1)}, {s(S_T+1)}, {s(S_T)}')
    for j in range(4):
        p.e(f'buffer_load_dwordx4 {v(V_L16)}, {s(S_WS,4)}, {s(S_T+1)} offen offset:{j*1024} lds')
    p.ext(q1[12:])
    dma_tile_u(p, S_VOFF, S_SV, S_MV)
    dma_tile_u(p, S_VOFF, S_SV, S_MV)
    dma_tile_u(p, S_KOFF, S_SK, S_MK)
    st_.stamp(5)
    p.e(f's_cmp_lt_i32 {s(S_D)}, 0')
    p.e('s_cbranch_scc1 K2_FORCED')
    p.e(f's_mov_b32 {s(S_N)}, -1')
    p.e('s_branch K2_MASKA')

    p.label('K2_LOOP')
    p.e(f's_cmp_eq_u32 {s(S_N)}, {s(S_TR)}')
    p.e('s_cbranch_scc1 K2_QSW')
    p.label('K2_QRET')
    smB = spread(sm_list(V_SB, V_PB, V_LA, V_LB, S_THR), 32, 0, 31)
    g0, g1 = pv(V_PA), qk(V_SA)
    emit_groups(p, g0, interleave(g0, kreads(0), 0, 12), smB[:16])
    emit_groups(p, g1, interleave(g1, vreads(1), 0, 12), smB[16:])
    p.e(f's_cmp_ge_i32 {s(S_D)}, 0')
    p.e('s_cbranch_vccnz K2_SLOWM')
    p.label('K2_RETM')
    p.e('s_cbranch_scc1 K2_MASKA')
    p.label('K2_RETMA')
    smA = spread(sm_list(V_SA, V_PA, V_LB, V_LA, S_THRE), 32, 0, 31)
    g2, g3 = pv(V_PB), qk(V_SB)
    sc = [f's_add_u32 {s(S_T+2)}, {s(S_N)}, 2',
          f's_lshl1_add_u32 {s(S_T+3)}, {s(S_T+2)}, {s(S_ALT)}',
          f's_cmp_ge_u32 {s(S_T+2)}, {s(S_TT)}',
          f's_cselect_b32 {s(S_T+2)}, {s(S_T+3)}, {s(S_T+2)}',
          f's_cselect_b32 {s(S_T+3)}, {s(S_Q1)}, {s(S_Q0)}',
          f's_lshl_b32 {s(S_DN)}, {s(S_T+2)}, 1',
          f's_sub_u32 {s(S_DN)}, {s(S_DN)}, {s(S_T+3)}',
          f's_and_b32 {s(S_T+2)}, {s(S_T+2)}, 3',
          f's_lshl_b32 {s(S_T+2)}, {s(S_T+2)}, 14',
          f'v_add_u32 {v(V_VA)}, {L_V}, {v(V_KA)}',
          f'v_add_u32 {v(V_KA)}, {s(S_T+2)}, {v(V_L16)}',
          f's_add_u32 {s(S_T+3)}, {s(S_N)}, 3',
          f's_cmp_gt_u32 {s(S_T+3)}, {s(S_TT)}']
    scs = [[] for _ in range(16)]
    for k, x in enumerate(sc):
        scs[k + 2].append(x)
    emit_groups(p, g2, interleave(g2, kreads(1), 0, 8), smA[:16], scs)
    p.e('s_cbranch_scc1 K2_W0')
    p.e('s_waitcnt vmcnt(8) lgkmcnt(0)')
    p.e('s_branch K2_W1')
    p.label('K2_W0')
    p.e('s_waitcnt vmcnt(0) lgkmcnt(0)')
    p.label('K2_W1')
    p.e('s_barrier')
    ds = [[] for _ in range(16)]
    ds[0].append(lambda: dma_tile(p, S_KOFF, S_LIM, S_SK, S_MK, 'K2_D0'))
    ds[2] += [f's_add_u32 {s(S_N)}, {s(S_N)}, 1',
              f's_cmp_ge_u32 {s(S_N)}, {s(S_TT)}',
              f's_cselect_b32 {s(S_LIM2)}, {s(S_LIM)}, 0']
    ds[3].append(lambda: dma_tile(p, S_KOFF, S_LIM2, S_SK, S_MK, 'K2_D1'))
    ds[6].append(lambda: dma_tile(p, S_VOFF, S_LIM, S_SV, S_MV, 'K2_D2'))
    ds[8] += [f's_cmp_gt_u32 {s(S_N)}, {s(S_TT)}',
              f's_cselect_b32 {s(S_LIM2)}, {s(S_LIM)}, 0']
    ds[9].append(lambda: dma_tile(p, S_VOFF, S_LIM2, S_SV, S_MV, 'K2_D3'))
    emit_groups(p, g3, interleave(g3, vreads(0), 0, 12), smA[16:], ds)
    p.e('s_cbranch_vccnz K2_SLOWE')
    p.label('K2_RETE')
    p.e(f's_cmp_ge_i32 {s(S_D)}, -1')
    p.e('s_cbranch_scc1 K2_MASKB')
    p.label('K2_RETMB')
    p.e(f's_mov_b32 {s(S_D)}, {s(S_DN)}')
    if stamps:
        p.e(f's_add_u32 s92, {s(S_N)}, 6')
        st_.stamp_dyn(92)
    p.e(f's_cmp_lt_u32 {s(S_N)}, 16')
    p.e('s_cbranch_scc1 K2_LOOP')
    smT = spread(sm_list(V_SB, V_PB, V_LA, V_LB, S_THR), 16, 0, 16)
    vr1 = [f'ds_read_b128 {v(V_FB+4*j,4)}, {v(V_VA)} offset:{8192+j*1024}' for j in range(8)]
    emit_groups(p, g0, interleave(g0, vr1, 0, 8), smT)
    p.e('s_cbranch_vccnz K2_SLOWM')
    p.label('K2_RETT')
    xreduce(p, 'v_add_f32', [V_LB, V_LB + 1], [V_T, V_T + 1])
    p.ext([x.replace(x.split(', ')[1], v(V_FB + 4 * (i >> 1), 4)) for i, x in enumerate(g2)])
    p.e(f'v_mov_b32 {v(V_LA)}, {v(V_NM)}')
    p.e(f'v_mov_b32 {v(V_LA+1)}, {v(V_NM+4)}')
    p.e(f's_lshl_b32 {s(S_T)}, {s(S_W)}, 10')
    p.e(f's_add_u32 {s(S_T)}, {s(S_T)}, {L_Q}')
    p.e(f'v_add_u32 {v(V_VA)}, {s(S_T)}, {v(V_L16)}')
    p.e(f's_lshl_b32 {s(S_T)}, {s(S_W)}, 13')
    p.e(f'v_add_u32 {v(V_KA)}, {s(S_T)}, {v(V_L16)}')
    p.e(f'ds_write_b128 {v(V_VA)}, {v(V_LA,4)}')
    p.e(f's_lshl_b32 {s(S_T)}, {s(S_G)}, 13')
    p.e(f's_add_u32 {s(S_CO1)}, {s(S_CO1)}, {s(S_T)}')
    p.e(f's_add_u32 {s(S_CO)}, {s(S_CO1)}, 4096')
    p.e(f's_cmp_eq_u32 {s(S_G)}, 0')
    p.e('s_cbranch_scc0 K2_FIN1')
    for g in range(2):
        if g:
            p.label('K2_FIN1')
        keep, send = V_O + 32 * g, V_O + 32 * (1 - g)
        for j in range(8):
            p.e(f'ds_write_b128 {v(V_KA)}, {v(send+4*j,4)} offset:{j*1024}')
        p.e(f'v_xor_b32 {v(V_VA)}, 4096, {v(V_VA)}')
        p.e(f'v_xor_b32 {v(V_KA)}, 32768, {v(V_KA)}')
        p.e('s_waitcnt lgkmcnt(0)')
        p.e('s_barrier')
        p.e(f'ds_read_b128 {v(V_E,4)}, {v(V_VA)}')
        for j in range(8):
            p.e(f'ds_read_b128 {v(V_FA+4*j,4)}, {v(V_KA)} offset:{j*1024}')
        for qt in range(2):
            n, ca, cb = V_T + qt, V_SA + qt, V_SA + 2 + qt
            p.e(f'v_min_f32 {v(n)}, {v(V_LA+qt)}, {v(V_E+qt)}')
            p.e(f'v_sub_f32 {v(ca)}, {v(n)}, {v(V_LA+qt)}')
            p.e(f'v_sub_f32 {v(cb)}, {v(n)}, {v(V_E+qt)}')
            p.e(f'v_exp_f32 {v(ca)}, {v(ca)}')
            p.e(f'v_exp_f32 {v(cb)}, {v(cb)}')
            p.e(f'v_mul_f32 {v(n)}, {v(ca)}, {v(V_LB+qt)}')
            p.e(f'v_fmac_f32 {v(n)}, {v(cb)}, {v(V_E+2+qt)}')
            p.e(f'v_rcp_f32 {v(n)}, {v(n)}')
            p.e(f'v_mul_f32 {v(ca)}, {v(ca)}, {v(n)}')
            p.e(f'v_mul_f32 {v(cb)}, {v(cb)}, {v(n)}')
        for b in range(4):
            qt = b & 1
            for i in range(8):
                p.e(f'v_mul_f32 {v(keep+8*b+i)}, {v(keep+8*b+i)}, {v(V_SA+qt)}')
            for i in range(8):
                p.e(f'v_fmac_f32 {v(keep+8*b+i)}, {v(V_FA+8*b+i)}, {v(V_SA+2+qt)}')
            for i in range(4):
                p.e(f'v_cvt_pk_bf16_f32 {v(V_FB+4*b+i)}, {v(keep+8*b+2*i)}, {v(keep+8*b+2*i+1)}')
            p.e(f'buffer_store_dwordx4 {v(V_FB+4*b,4)}, {v(V_L16)}, {s(S_WS,4)}, {s(S_CO if b >> 1 else S_CO1)} offen offset:{qt*1024}')
        p.e('s_branch K2_FIN')

    p.label('K2_QSW')
    p.e(f's_lshl_b32 {s(S_T)}, {s(S_WQ)}, 13')
    p.e(f's_add_u32 {s(S_T)}, {s(S_T)}, {L_Q}')
    p.e(f'v_add_u32 {v(V_T)}, {s(S_T)}, {v(V_L16)}')
    for j in range(8):
        p.e(f'ds_read_b128 {v(V_Q+4*j,4)}, {v(V_T)} offset:{j*1024}')
    p.e(f's_mov_b32 {s(S_THRE)}, -1.0')
    p.e('s_branch K2_QRET')

    mask_block(p, V_SA, 'K2_MASKA', 'K2_MA_RET', 0)
    p.label('K2_MA_RET')
    p.e(f's_cmp_ge_i32 {s(S_N)}, 0')
    p.e('s_cbranch_scc1 K2_RETMA')
    p.e(f's_mov_b32 {s(S_N)}, 0')
    p.e('s_branch K2_FORCED')
    mask_block(p, V_SB, 'K2_MASKB', 'K2_RETMB', 1)

    p.label('K2_SLOWM')
    slow_core(p, V_SB, V_SA, V_PB, V_LA, V_LB, 'K2_SLOWM')
    p.e(f's_cmp_eq_u32 {s(S_N)}, 16')
    p.e('s_cbranch_scc1 K2_RETT')
    p.e(f's_cmp_ge_i32 {s(S_D)}, 0')
    p.e('s_branch K2_RETM')

    p.label('K2_SLOWE')
    p.e(f's_cmp_eq_u32 {s(S_THRE)}, {s(S_THR)}')
    p.e('s_cbranch_scc1 K2_FORCED')
    xreduce(p, 'v_add_f32', [V_LB, V_LB + 1], [V_T, V_T + 1])
    for qt in range(2):
        p.e(f'v_rcp_f32 {v(V_T+qt)}, {v(V_LB+qt)}')
    for b in range(8):
        qt = b & 1
        for i in range(8):
            p.e(f'v_mul_f32 {v(V_O+8*b+i)}, {v(V_O+8*b+i)}, {v(V_T+qt)}')
        d = V_X + 4 * (b & 3)
        for i in range(4):
            p.e(f'v_cvt_pk_bf16_f32 {v(d+i)}, {v(V_O+8*b+2*i)}, {v(V_O+8*b+2*i+1)}')
        p.e(f'buffer_store_dwordx4 {v(d,4)}, {v(V_L16)}, {s(S_WS,4)}, {s(S_CO)} offen offset:{qt*1024}')
        if qt:
            p.e(f's_add_u32 {s(S_CO)}, {s(S_CO)}, 4096')
        for i in range(8):
            p.e(f'v_mov_b32 {v(V_O+8*b+i)}, 0')
    for qt in range(2):
        p.e(f'v_mov_b32 {v(V_LB+qt)}, 0')
    p.e(f's_mov_b32 {s(S_THRE)}, {s(S_THR)}')
    p.e(f's_mov_b32 {s(S_FLOOR)}, 0xff800000')
    p.label('K2_FORCED')
    slow_core(p, V_SA, V_SB, V_PA, V_LB, V_LA, 'K2_SLOWE')
    p.e('s_branch K2_RETE')

    p.label('K2_FIN')
    st_.stamp(23)
    st_.flush(S_WS, S_W, WS_STAMP + 0x80000, 24, 6)
    p.label('K2_END')
    p.e('s_endpgm')
    p.finalize()
    return p
```

```python
from asmlib import *
from layout import *
import struct

KVP = 112
WPH = 144
QA = 148
WO = 156
T = 160


def f32hex(x):
    return '0x%08x' % struct.unpack('<I', struct.pack('<f', x))[0]


def loads(p, G):
    g = type('G', (), G)
    S_T, S_H, S_I, S_W, S_WS, S_A, V_LANE = g.S_T, g.S_H, g.S_I, g.S_W, g.S_WS, g.S_A, g.V_LANE
    ptr, OOB = G['ptr'], g.OOB
    a = S_T + 5
    p.e(f'v_lshlrev_b32 {v(T)}, 4, v0')
    p.e(f'v_mov_b32 {v(T+1)}, {OOB}')
    p.e(f'v_cmp_gt_u32 vcc, 384, v0')
    p.e(f'v_cndmask_b32 {v(T)}, {v(T+1)}, {v(T)}, vcc')
    p.e(f's_mul_i32 {s(a)}, {s(S_H)}, 6144')
    p.e(f's_add_u32 {s(a)}, {s(a)}, {WS_KVP}')
    for rb in range(8):
        p.e(f'buffer_load_dwordx4 {v(KVP+4*rb,4)}, {v(T)}, {s(S_WS,4)}, {s(a)} offen')
        if rb < 7:
            p.e(f's_add_u32 {s(a)}, {s(a)}, {32*6144}')
    p.e(f's_mul_i32 {s(a)}, {s(S_H)}, 800')
    p.e(f's_add_u32 {s(S_A)}, {s(ptr("A_w_phi"))}, {s(a)}')
    p.e(f's_addc_u32 {s(S_A+1)}, {s(ptr("A_w_phi")+1)}, 0')
    p.e(f's_mov_b32 {s(S_A+2)}, 800')
    p.e(f'buffer_load_dwordx4 {v(WPH,4)}, {v(g.V_L16)}, {s(S_A,4)}, 0 offen')
    p.e(f'v_and_b32 {v(T+2)}, 31, {v(V_LANE)}')
    p.e(f'v_lshlrev_b32 {v(T+2)}, 3, {v(T+2)}')
    p.e(f'v_lshrrev_b32 {v(T+3)}, 5, {v(V_LANE)}')
    p.e(f'v_lshl_add_u32 {v(T+3)}, {v(T+3)}, 15, {v(T+2)}')
    p.e(f'v_cmp_gt_u32 vcc, 32, {v(V_LANE)}')
    p.e(f'v_cndmask_b32 {v(T+2)}, {v(T+1)}, {v(T+2)}, vcc')
    p.e(f's_mul_i32 {s(a)}, {s(S_H)}, {5*16384}')
    p.e(f's_lshl_b32 {s(a+1)}, {s(g.S_Q0)}, 8')
    p.e(f's_add_u32 {s(a)}, {s(a)}, {s(a+1)}')
    p.e(f's_add_u32 {s(a)}, {s(a)}, {WS_QA}')
    p.e(f'buffer_load_dwordx2 {v(QA,2)}, {v(T+3)}, {s(S_WS,4)}, {s(a)} offen')
    p.e(f's_add_u32 {s(a+1)}, {s(a)}, 16384')
    p.e(f'buffer_load_dwordx2 {v(QA+2,2)}, {v(T+3)}, {s(S_WS,4)}, {s(a+1)} offen')
    p.e(f's_add_u32 {s(a)}, {s(a)}, 65536')
    p.e(f'buffer_load_dwordx2 {v(QA+4,2)}, {v(T+2)}, {s(S_WS,4)}, {s(a)} offen')
    p.e(f'v_mov_b32 {v(QA+6)}, 0')
    p.e(f'v_mov_b32 {v(QA+7)}, 0')
    for j in range(3):
        p.e(f'v_add_u32 {v(T+4)}, {64*j}, {v(V_LANE)}')
        p.e(f'v_mul_u32_u24 {v(T+4)}, 1639, {v(T+4)}')
        p.e(f'v_lshrrev_b32 {v(T+4)}, 16, {v(T+4)}')
        p.e(f'v_mul_u32_u24 {v(T+4)}, 640, {v(T+4)}')
        p.e(f'v_add_u32 {v(WO+j)}, {v(T+4)}, {v(g.V_L16)}')
    p.e(f'v_cndmask_b32 {v(WO+2)}, {v(T+1)}, {v(WO+2)}, vcc')
    p.e(f's_lshr_b32 {s(a)}, {s(S_I)}, 1')
    p.e(f's_lshl2_add_u32 {s(a)}, {s(S_H)}, {s(a)}')
    p.e(f's_lshl3_add_u32 {s(a+1)}, {s(a)}, {s(S_W)}')
    p.e(f's_mul_i32 {s(a+1)}, {s(a+1)}, 5120')
    p.e(f's_and_b32 {s(a+2)}, {s(S_I)}, 1')
    p.e(f's_mul_i32 {s(a+2)}, {s(a+2)}, 640')
    p.e(f's_add_u32 {s(a+1)}, {s(a+1)}, {s(a+2)}')
    p.e(f's_mul_i32 {s(a+2)}, {s(S_W)}, 3072')
    p.e(f's_add_u32 m0, {s(a+2)}, {g.L_WFB}')
    p.e(f's_mov_b32 {s(S_A)}, {s(ptr("B_w_o"))}')
    p.e(f's_mov_b32 {s(S_A+1)}, {s(ptr("B_w_o")+1)}')
    p.e(f's_mov_b32 {s(S_A+2)}, {4096*1280}')
    for j in range(3):
        p.e(f'buffer_load_dwordx4 {v(WO+j)}, {s(S_A,4)}, {s(a+1)} offen offset:{1024*j} lds')
    p.e(f's_cmp_ge_u32 {s(S_H)}, 5')
    p.e('s_cbranch_scc1 K2A_NOA')
    p.e(f's_add_u32 m0, {s(a+2)}, {g.L_WFA}')
    p.e(f's_mov_b32 {s(S_A)}, {s(ptr("A_wo"))}')
    p.e(f's_mov_b32 {s(S_A+1)}, {s(ptr("A_wo")+1)}')
    p.e(f's_mov_b32 {s(S_A+2)}, {640*1280}')
    for j in range(3):
        p.e(f'buffer_load_dwordx4 {v(WO+j)}, {s(S_A,4)}, {s(a+1)} offen offset:{1024*j} lds')
    p.label('K2A_NOA')


def compute(p, G, st_):
    g = type('G', (), G)
    S_T, S_H, S_I, S_W, S_WS, V_LANE, V_L16 = g.S_T, g.S_H, g.S_I, g.S_W, g.S_WS, g.V_LANE, g.V_L16
    OOB = g.OOB
    a = S_T + 5
    AKV, AW0, AW1, AWF, SGN, AO = T, T + 1, T + 2, T + 3, T + 4, T + 5
    t = T + 8
    p.e(f's_cmp_ge_u32 {s(S_W)}, 3')
    p.e(f's_cselect_b32 {s(S_T)}, {32*48-48}, 0')
    p.e(f's_lshl4_add_u32 {s(S_T)}, {s(S_W)}, {s(S_T)}')
    p.e(f's_add_u32 {s(S_T)}, {s(S_T)}, {g.L_KVF}')
    p.e(f'v_and_b32 {v(t)}, 31, {v(V_LANE)}')
    p.e(f'v_mul_u32_u24 {v(t)}, 48, {v(t)}')
    p.e(f'v_lshrrev_b32 {v(t+1)}, 5, {v(V_LANE)}')
    p.e(f'v_lshl_add_u32 {v(t)}, {v(t+1)}, 3, {v(t)}')
    p.e(f'v_add_u32 {v(AKV)}, {s(S_T)}, {v(t)}')
    p.e(f'v_bfe_u32 {v(t+2)}, {v(V_LANE)}, 2, 2')
    p.e(f'v_mul_u32_u24 {v(t+3)}, 40, {v(t+2)}')
    p.e(f'v_and_b32 {v(t)}, 16, {v(V_LANE)}')
    p.e(f'v_add_u32 {v(t+3)}, {v(t+3)}, {v(t)}')
    p.e(f'v_and_b32 {v(t)}, 2, {v(V_LANE)}')
    p.e(f'v_lshl_add_u32 {v(t+3)}, {v(t)}, 2, {v(t+3)}')
    p.e(f'v_add_u32 {v(AW1)}, {g.L_WI}, {v(t+3)}')
    p.e(f'v_mul_u32_u24 {v(t)}, 320, {v(t+1)}')
    p.e(f'v_add_u32 {v(AW0)}, {v(AW1)}, {v(t)}')
    p.e(f'v_lshlrev_b32 {v(t)}, 29, {v(V_LANE)}')
    p.e(f'v_and_b32 {v(t)}, 0x80000000, {v(t)}')
    p.e(f'v_lshrrev_b32 {v(SGN)}, 16, {v(t)}')
    p.e(f'v_or_b32 {v(SGN)}, {v(SGN)}, {v(t)}')
    p.e(f'v_lshrrev_b32 {v(t)}, 4, {v(V_LANE)}')
    p.e(f'v_mul_u32_u24 {v(t)}, 3072, {v(t)}')
    p.e(f'v_mul_u32_u24 {v(t+2)}, 640, {v(t+2)}')
    p.e(f'v_and_b32 {v(t+3)}, 3, {v(V_LANE)}')
    p.e(f'v_lshl_add_u32 {v(t)}, {v(t+3)}, 3, {v(t)}')
    p.e(f's_lshl_b32 {s(S_T)}, {s(S_W)}, 5')
    p.e(f's_add_u32 {s(S_T)}, {s(S_T)}, {g.L_WFB}')
    p.e(f'v_add3_u32 {v(AWF)}, {v(t)}, {v(t+2)}, {s(S_T)}')
    p.e(f's_mul_i32 {s(S_T)}, {s(S_H)}, 5')
    p.e(f'v_and_b32 {v(t+2)}, 15, {v(V_LANE)}')
    p.e(f'v_lshlrev_b32 {v(t+2)}, 4, {v(t+2)}')
    p.e(f'v_and_b32 {v(t+3)}, 16, {v(V_LANE)}')
    p.e(f'v_lshl_add_u32 {v(t+2)}, {v(t+3)}, 6, {v(t+2)}')
    p.e(f'v_add_u32 {v(t+2)}, {128*4096}, {v(t+2)}')
    for i in range(3):
        p.e(f'v_add3_u32 {v(t)}, {v(t+1)}, {s(S_T)}, {2*i}')
        p.e(f'v_lshrrev_b32 {v(t+3)}, 3, {v(t)}')
        p.e(f'v_lshl_add_u32 {v(AO+i)}, {v(t+3)}, 12, {v(t+2)}')
        p.e(f'v_and_b32 {v(t+3)}, 3, {v(t)}')
        p.e(f'v_lshl_add_u32 {v(AO+i)}, {v(t+3)}, 8, {v(AO+i)}')
        p.e(f'v_and_b32 {v(t+3)}, 4, {v(t)}')
        p.e(f'v_lshl_add_u32 {v(AO+i)}, {v(t+3)}, 1, {v(AO+i)}')
    p.e(f'v_mov_b32 {v(t)}, {OOB}')
    p.e(f'v_cmp_gt_u32 vcc, 32, {v(V_LANE)}')
    p.e(f'v_cndmask_b32 {v(AO+2)}, {v(t)}, {v(AO+2)}, vcc')
    p.e(f's_and_b32 {s(S_T)}, {s(S_I)}, 1')
    p.e(f's_mul_i32 {s(S_T)}, {s(S_T)}, 20')
    p.e(f's_add_u32 {s(S_T)}, {s(S_T)}, {s(S_W)}')
    p.e(f's_mul_i32 {s(a)}, {s(a)}, 5120')
    p.e(f's_add_u32 {s(a)}, {s(a)}, {WS_WF}')
    for k in range(3):
        o = a + 1 + k
        p.e(f's_mul_i32 {s(S_T+1)}, {s(S_T)}, 52')
        p.e(f's_lshr_b32 {s(S_T+1)}, {s(S_T+1)}, 8')
        p.e(f's_mul_i32 {s(o)}, {s(S_T+1)}, {(NSTEP-1)*5120}')
        p.e(f's_lshl_b32 {s(S_T+1)}, {s(S_T)}, 10')
        p.e(f's_add_u32 {s(o)}, {s(o)}, {s(S_T+1)}')
        p.e(f's_add_u32 {s(o)}, {s(o)}, {s(a)}')
        p.e(f's_add_u32 {s(S_T)}, {s(S_T)}, 8')
    p.e(f's_cmp_ge_u32 {s(S_W)}, 4')
    p.e(f's_cselect_b32 {s(a+3)}, {OOB}, {s(a+3)}')
    for step in (1, 2, 4):
        for b in range(0, 8, 2 * step):
            for i in range(4):
                p.e(f'v_add_f32 {v(KVP+4*b+i)}, {v(KVP+4*b+i)}, {v(KVP+4*(b+step)+i)}')
    p.e(f'v_cvt_pk_bf16_f32 {v(KVP)}, {v(KVP)}, {v(KVP+1)}')
    p.e(f'v_cvt_pk_bf16_f32 {v(KVP+1)}, {v(KVP+2)}, {v(KVP+3)}')
    p.e(f's_cmp_ge_u32 {s(S_W)}, 6')
    p.e('s_cbranch_scc1 K2A_NOKV')
    p.e(f'ds_write_b64 {v(AKV)}, {v(KVP,2)}')
    p.e('s_branch K2A_B1')
    p.label('K2A_NOKV')
    p.e(f'v_add_u32 {v(t)}, {g.L_WI}, {v(V_L16)}')
    p.e(f'ds_write_b128 {v(t)}, {v(WPH,4)}')
    p.label('K2A_B1')
    st_.stamp(2)
    p.e('s_waitcnt vmcnt(18) lgkmcnt(0)')
    p.e('s_barrier')
    st_.stamp(3)
    WF_, KVF, D0, PB, D2 = 24, 40, 112, 52, 64
    for tt in range(2):
        for ks in range(2):
            for j in range(2):
                p.e(f'ds_read_b64_tr_b16 {v(WF_+4*(2*tt+ks)+2*j,2)}, {v(AW1 if ks else AW0)} offset:{640*ks+160*j+32*tt}')
    p.e(f'v_mul_u32_u24 {v(t)}, 48, {v(V_LANE)}')
    p.e(f'v_add_u32 {v(t)}, {g.L_KVF}, {v(t)}')
    for k in range(3):
        p.e(f'ds_read_b128 {v(KVF+4*k,4)}, {v(t)} offset:{16*k}')
    X = g.V_X
    p.e(f's_cmp_ge_u32 {s(S_H)}, 5')
    p.e('s_cbranch_scc1 K2A_NOA2')
    for k in range(3):
        for j in range(2):
            p.e(f'ds_read_b64_tr_b16 {v(X+4*k+2*j,2)}, {v(AWF)} offset:{g.L_WFA-g.L_WFB+256*k+12288*j}')
    for k in range(3):
        p.e(f's_add_u32 {s(S_T)}, {s(a+1+k)}, {128*5120}')
        p.e(f'buffer_store_dwordx4 {v(X+4*k,4)}, {v(V_L16)}, {s(S_WS,4)}, {s(S_T)} offen')
    p.label('K2A_NOA2')
    for k in range(3):
        for j in range(2):
            p.e(f'ds_read_b64_tr_b16 {v(D2+4*k+2*j,2)}, {v(AWF)} offset:{256*k+12288*j}')
    for i in range(16):
        p.e(f'v_xor_b32 {v(WF_+i)}, {v(SGN)}, {v(WF_+i)}')
    for tt in range(2):
        for ks in range(2):
            d = v(D0 + 16 * tt, 16)
            p.e(f'v_mfma_f32_32x32x16_bf16 {d}, {v(WF_+4*(2*tt+ks),4)}, {v(QA+4*ks,4)}, {d if ks else 0}')
    for k in range(3):
        p.e(f'buffer_store_dwordx4 {v(D2+4*k,4)}, {v(V_L16)}, {s(S_WS,4)}, {s(a+1+k)} offen')
    sL = S_T
    p.e(f's_mov_b32 {s(sL)}, {f32hex(1.4426950408889634)}')
    p.e(f's_mov_b32 {s(sL+1)}, {s(sL)}')
    mx = t
    P = D0
    p.e(f'v_max3_f32 {v(mx)}, {v(P)}, {v(P+1)}, {v(P+2)}')
    p.e(f'v_max3_f32 {v(mx+1)}, {v(P+3)}, {v(P+4)}, {v(P+5)}')
    for i in range(6, 18, 4):
        p.e(f'v_max3_f32 {v(mx)}, {v(mx)}, {v(P+i)}, {v(P+i+1)}')
        p.e(f'v_max3_f32 {v(mx+1)}, {v(mx+1)}, {v(P+i+2)}, {v(P+i+3)}')
    p.e(f'v_max3_f32 {v(mx)}, {v(mx)}, {v(P+18)}, {v(P+19)}')
    p.e(f'v_max_f32 {v(mx)}, {v(mx)}, {v(mx+1)}')
    p.e(f'v_mul_f32 {v(mx)}, {s(sL)}, {v(mx)}')
    for i in range(0, 20, 2):
        p.e(f'v_pk_fma_f32 {v(P+i,2)}, {v(P+i,2)}, {s(sL,2)}, {v(mx,2)} op_sel_hi:[1,1,0] neg_lo:[0,0,1] neg_hi:[0,0,1]')
    for i in range(20):
        p.e(f'v_exp_f32 {v(P+i)}, {v(P+i)}')
    p.e(f'v_pk_add_f32 {v(mx,2)}, {v(P,2)}, {v(P+2,2)}')
    p.e(f'v_pk_add_f32 {v(mx+2,2)}, {v(P+4,2)}, {v(P+6,2)}')
    for i in range(8, 20, 4):
        p.e(f'v_pk_add_f32 {v(mx,2)}, {v(mx,2)}, {v(P+i,2)}')
        p.e(f'v_pk_add_f32 {v(mx+2,2)}, {v(mx+2,2)}, {v(P+i+2,2)}')
    p.e(f'v_pk_add_f32 {v(mx,2)}, {v(mx,2)}, {v(mx+2,2)}')
    p.e(f'v_add_f32 {v(mx)}, {v(mx)}, {v(mx+1)}')
    p.e(f'v_rcp_f32 {v(mx)}, {v(mx)}')
    p.e(f'v_mov_b32 {v(PB+10)}, 0')
    p.e(f'v_mov_b32 {v(PB+11)}, 0')
    for i in range(0, 20, 2):
        p.e(f'v_pk_mul_f32 {v(P+i,2)}, {v(P+i,2)}, {v(mx,2)} op_sel_hi:[1,0]')
    for i in range(10):
        p.e(f'v_cvt_pk_bf16_f32 {v(PB+i)}, {v(P+2*i)}, {v(P+2*i+1)}')
    d = v(D2, 16)
    for k in range(3):
        p.e(f'v_mfma_f32_32x32x16_bf16 {d}, {v(KVF+4*k,4)}, {v(PB+4*k,4)}, {d if k else 0}')
    p.e(f'v_add_f32 {v(mx)}, {f32hex(1e-6)}, {v(D2+12)}')
    p.e(f'v_rcp_f32 {v(mx)}, {v(mx)}')
    for i in range(0, 12, 2):
        p.e(f'v_pk_mul_f32 {v(D2+i,2)}, {v(D2+i,2)}, {v(mx,2)} op_sel_hi:[1,0]')
    for i in range(6):
        p.e(f'v_cvt_pk_bf16_f32 {v(WF_+i)}, {v(D2+2*i)}, {v(D2+2*i+1)}')
    for i in range(3):
        p.e(f'buffer_store_dwordx2 {v(WF_+2*i,2)}, {v(AO+i)}, {s(S_WS,4)}, {s(g.S_CO)} offen')
    return 6
```

```python
from asmlib import *
from layout import *
import os

V_LANE = 1
V_L16 = 2
V_OA = 3
V_T = 4
V_ACC = 8
V_F = 88
DEPTH = 4

S_W = 3
S_Q = 4
S_NT = 5
S_PTR = 8
S_SC = 16
S_SW = 20
S_SO = 24
S_CO = 28
S_WO = 29
S_CI = 30
S_WI = 31
S_CNT = 32
S_WO2 = 33
S_T = 34
S_WS = 44


def loads(k):
    F = V_F + 36 * k
    L = [f'buffer_load_dwordx4 {v(F+4*j,4)}, {v(V_L16)}, {s(S_SC,4)}, {s(S_CO)} offen offset:{1024*j}' for j in range(4)]
    W = [f'buffer_load_dwordx4 {v(F+16+4*j,4)}, {v(V_L16)}, {s(S_SW,4)}, {s(S_WO)} offen offset:{1024*j}' for j in range(4)]
    W.append(f'buffer_load_dwordx4 {v(F+32,4)}, {v(V_L16)}, {s(S_SW,4)}, {s(S_WO2)} offen')
    o = [L[0], W[0], L[1], L[2], L[3], W[1], W[2], W[3],
         [W[4], f's_add_u32 {s(S_CO)}, {s(S_CO)}, {s(S_CI)}', f's_add_u32 {s(S_WO)}, {s(S_WO)}, {s(S_WI)}',
          f's_add_u32 {s(S_WO2)}, {s(S_WO2)}, {s(S_WI)}']]
    return o


def build(name='k3_kernel', stamps=False):
    p = Prog()
    st_ = Stamps(p, 7, 90, stamps)
    p.e('s_cmp_ge_u32 s2, 256')
    p.e('s_cbranch_scc1 K3_END')
    st_.start()
    p.e(f's_load_dwordx2 {s(S_PTR,2)}, s[0:1], 80')
    p.e(f's_load_dwordx2 {s(S_PTR+4,2)}, s[0:1], 96')
    if int(os.environ.get('PF', '3')) & 4:
        code_prefetch(p, 6, 5, S_WS, 'k3_kernel', 'K3_END', 'K3')
    p.e(f'v_lshrrev_b32 {v(2)}, 6, v0')
    p.e(f'v_and_b32 {v(V_LANE)}, 63, v0')
    p.e(f'v_readfirstlane_b32 {s(S_W)}, {v(2)}')
    p.e(f'v_lshlrev_b32 {v(V_L16)}, 4, {v(V_LANE)}')
    p.e(f's_and_b32 {s(S_T)}, s2, 3')
    p.e(f's_bfe_u32 {s(S_T+1)}, s2, 0x30003')
    p.e(f's_lshl3_add_u32 {s(S_Q)}, {s(S_T)}, {s(S_T+1)}')
    p.e(f's_and_b32 {s(S_T)}, s2, 4')
    p.e(f's_lshr_b32 {s(S_T+1)}, s2, 6')
    p.e(f's_add_u32 {s(S_NT)}, {s(S_T)}, {s(S_T+1)}')
    p.e(f's_mul_i32 {s(S_T)}, {s(S_Q)}, {NSTEP*4096}')
    p.e(f's_add_u32 {s(S_T)}, {s(S_T)}, {WS_CTX}')
    p.e(f's_mul_i32 {s(S_T+1)}, {s(S_NT)}, {NSTEP*5120}')
    p.e(f's_add_u32 {s(S_T+1)}, {s(S_T+1)}, {WS_WF}')
    p.e(f's_cmp_eq_u32 {s(S_W)}, 7')
    p.e(f's_cselect_b32 {s(S_T+2)}, 128, {s(S_W)}')
    p.e(f's_cselect_b32 {s(S_T+3)}, 1, 7')
    p.e(f's_movk_i32 {s(S_T+4)}, 128')
    p.e(f's_cselect_b32 {s(S_T+4)}, 148, {s(S_T+4)}')
    p.e(f's_lshl_b32 {s(S_CO)}, {s(S_T+2)}, 12')
    p.e(f's_mul_i32 {s(S_WO)}, {s(S_T+2)}, 5120')
    p.e(f's_add_u32 {s(S_WO2)}, {s(S_WO)}, 4096')
    p.e(f's_lshl_b32 {s(S_CI)}, {s(S_T+3)}, 12')
    p.e(f's_mul_i32 {s(S_WI)}, {s(S_T+3)}, 5120')
    p.e(f's_lshl_b32 {s(S_SC+2)}, {s(S_T+4)}, 12')
    p.e(f's_mul_i32 {s(S_SW+2)}, {s(S_T+4)}, 5120')
    for r in (S_SC, S_SW, S_SO, S_WS):
        p.e(f's_mov_b32 {s(r+3)}, 0x00020000')
    p.e('s_waitcnt lgkmcnt(0)')
    p.e(f's_add_u32 {s(S_SC)}, {s(S_PTR+4)}, {s(S_T)}')
    p.e(f's_addc_u32 {s(S_SC+1)}, {s(S_PTR+5)}, 0')
    p.e(f's_add_u32 {s(S_SW)}, {s(S_PTR+4)}, {s(S_T+1)}')
    p.e(f's_addc_u32 {s(S_SW+1)}, {s(S_PTR+5)}, 0')
    for k in range(DEPTH - 1):
        p.ext(loads(k))
    p.e(f's_mov_b32 {s(S_SO)}, {s(S_PTR)}')
    p.e(f's_mov_b32 {s(S_SO+1)}, {s(S_PTR+1)}')
    p.e(f's_mov_b32 {s(S_SO+2)}, {2048*2560}')
    p.e(f's_mov_b32 {s(S_WS)}, {s(S_PTR+4)}')
    p.e(f's_mov_b32 {s(S_WS+1)}, {s(S_PTR+5)}')
    p.e(f's_mov_b32 {s(S_WS+2)}, {WS_SIZE}')
    for i in range(80):
        p.e(f'v_mov_b32 {v(V_ACC+i)}, 0')
    p.e(f's_cmp_lt_u32 {s(S_W)}, 2')
    p.e(f's_cselect_b32 {s(S_CNT)}, 19, 18')
    p.e(f's_cmp_eq_u32 {s(S_W)}, 7')
    p.e(f's_cselect_b32 {s(S_CNT)}, 20, {s(S_CNT)}')
    p.e(f'v_and_b32 {v(V_T)}, 15, {v(V_LANE)}')
    p.e(f'v_mul_u32_u24 {v(V_T)}, 2560, {v(V_T)}')
    p.e(f'v_lshrrev_b32 {v(V_OA)}, 4, {v(V_LANE)}')
    p.e(f'v_lshl_add_u32 {v(V_OA)}, {v(V_OA)}, 3, {v(V_T)}')
    st_.stamp(1)
    p.label('K3_LOOP')
    for k in range(DEPTH):
        F = V_F + 36 * k
        m = [f'v_mfma_f32_16x16x32_bf16 {v(V_ACC+4*(4*t+u),4)}, {v(F+16+4*t,4)}, {v(F+4*u,4)}, {v(V_ACC+4*(4*t+u),4)}'
             for t in range(5) for u in range(4)]
        sl = interleave(m, loads((k + DEPTH - 1) % DEPTH), 1, 19)
        for a, b in zip(m, sl):
            p.e(a)
            p.ext(b)
        p.e(f's_sub_u32 {s(S_CNT)}, {s(S_CNT)}, 1')
        p.e(f's_cmp_eq_u32 {s(S_CNT)}, 0')
        if k < DEPTH - 1:
            p.e('s_cbranch_scc1 K3_DONE')
        else:
            p.e('s_cbranch_scc0 K3_LOOP')
    p.label('K3_DONE')
    st_.stamp(2)
    p.e(f's_mul_i32 {s(S_T)}, {s(S_Q)}, {64*2560}')
    p.e(f's_mul_i32 {s(S_T+1)}, {s(S_NT)}, 160')
    p.e(f's_add_u32 {s(S_T)}, {s(S_T)}, {s(S_T+1)}')
    p.e(f's_cmp_eq_u32 {s(S_W)}, 7')
    p.e('s_cbranch_scc1 K3_A')
    p.e(f's_mul_i32 {s(S_T+1)}, {s(S_W)}, 20480')
    p.e(f'v_add_u32 {v(V_T)}, {s(S_T+1)}, {v(V_L16)}')
    for j in range(20):
        p.e(f'ds_write_b128 {v(V_T)}, {v(V_ACC+4*j,4)} offset:{1024*j}')
    p.e(f's_mul_i32 {s(S_T+1)}, {s(S_W)}, 3072')
    p.e(f'v_add_u32 {v(V_T)}, {s(S_T+1)}, {v(V_L16)}')
    p.e(f'v_add_u32 {v(V_T+1)}, {3*20480}, {v(V_T)}')
    p.e(f'v_add_u32 {v(V_T+2)}, {6*20480}, {v(V_T)}')
    p.e('s_waitcnt vmcnt(0) lgkmcnt(0)')
    p.e('s_barrier')
    R = V_F
    for j in range(3):
        for q in range(7):
            p.e(f'ds_read_b128 {v(R+4*(7*j+q),4)}, {v(V_T+q//3)} offset:{(q%3)*20480+1024*j}')
    p.e(f's_mul_i32 {s(S_T+1)}, {s(S_W)}, 3')
    for j in range(3):
        b = R + 28 * j
        for (x, y) in ((0, 1), (2, 3), (4, 5), (0, 2), (4, 6), (0, 4)):
            for i in range(0, 4, 2):
                p.e(f'v_pk_add_f32 {v(b+4*x+i,2)}, {v(b+4*x+i,2)}, {v(b+4*y+i,2)}')
        p.e(f'v_cvt_pk_bf16_f32 {v(b)}, {v(b)}, {v(b+1)}')
        p.e(f'v_cvt_pk_bf16_f32 {v(b+1)}, {v(b+2)}, {v(b+3)}')
        p.e(f's_and_b32 {s(S_T+2)}, {s(S_T+1)}, 3')
        p.e(f's_mul_i32 {s(S_T+2)}, {s(S_T+2)}, {16*2560}')
        p.e(f's_lshr_b32 {s(S_T+3)}, {s(S_T+1)}, 2')
        p.e(f's_lshl_b32 {s(S_T+3)}, {s(S_T+3)}, 5')
        p.e(f's_add_u32 {s(S_T+2)}, {s(S_T+2)}, {s(S_T+3)}')
        p.e(f's_add_u32 {s(S_T+2)}, {s(S_T+2)}, {s(S_T)}')
        if j == 2:
            p.e(f's_cmp_eq_u32 {s(S_W)}, 6')
            p.e('s_cbranch_scc1 K3_FIN')
        p.e(f'buffer_store_dwordx2 {v(b,2)}, {v(V_OA)}, {s(S_SO,4)}, {s(S_T+2)} offen offset:1280')
        p.e(f's_add_u32 {s(S_T+1)}, {s(S_T+1)}, 1')
    p.e('s_branch K3_FIN')
    p.label('K3_A')
    p.e('s_barrier')
    p.e('s_waitcnt vmcnt(0)')
    for u in range(4):
        for t in range(5):
            a = V_ACC + 4 * (4 * t + u)
            p.e(f'v_cvt_pk_bf16_f32 {v(a)}, {v(a)}, {v(a+1)}')
            p.e(f'v_cvt_pk_bf16_f32 {v(a+1)}, {v(a+2)}, {v(a+3)}')
            p.e(f'buffer_store_dwordx2 {v(a,2)}, {v(V_OA)}, {s(S_SO,4)}, {s(S_T)} offen offset:{32*t}')
        p.e(f's_add_u32 {s(S_T)}, {s(S_T)}, {16*2560}')
    p.label('K3_FIN')
    st_.stamp(3)
    st_.flush(S_WS, S_W, WS_STAMP + 0x100000, 4, 6)
    p.label('K3_END')
    p.e('s_endpgm')
    p.finalize()
    return p
```

```python
WS_Q = 0x0000000
WS_K = 0x1000000
WS_V = 0x2000000
WS_CTX = 0x3000000
WS_WF = 0x4400000
WS_QA = 0x4C00000
WS_KVP = 0x5000000
WS_SIZE = 0x10000000
NSTEP = 148
KA = dict(A_x=0, A_wqkv=8, A_w_phi=16, A_wo=24, B_x=32, B_c_kv=40, B_w_q=48, B_w_uk=56, B_w_uv=64, B_w_o=72,
          out=80, dbg=88, ws=96)
QSCALE = 1.4426950408889634 / (128 ** 0.5)
WS_STAMP = 0x6000000
```

```python
import sys
from asmlib import *
import k1, k2, k3
HEAD = open('concat_heads__linear_kernel_hedgehog__compressed_kv_cla__prompt.s.ref').read().split('; Override launch')[0]

def make(kernels, path):
    t = HEAD
    for name, prog, lds in kernels:
        t += f'; @launch kernel={name} grid=(256,1,1) block=(512,1,1) lds={lds}\n'
    t += '.amdgcn_target "amdgcn-amd-amdhsa--gfx950"\n'
    ds = ''
    for name, prog, lds in kernels:
        c, d = kernel_text(name, prog)
        t += c
        ds += d
        print(name, prog.stats(), prog.max_regs())
    open(path, 'w').write(t + ds)

import os
STAMPS = bool(int(os.environ.get('STAMPS','0')))
if __name__ == '__main__':
    out = sys.argv[1] if len(sys.argv) > 1 else 'cur.s'
    ks = [('k1_kernel', k1.build(stamps=STAMPS, a2=True), 163840), ('k2_kernel', k2.build(stamps=STAMPS), 163840), ('k3_kernel', k3.build(stamps=STAMPS), 144384)]
    make(ks, out)
```

```python
import re

REG_RE = re.compile(r'^(-|abs\()?([vsa])(\d+)\)?$')
RNG_RE = re.compile(r'^(-|abs\()?([vsa])\[(\d+):(\d+)\]\)?$')

TRANS = ('v_exp_f32', 'v_log_f32', 'v_rcp_f32', 'v_rsq_f32', 'v_sqrt_f32', 'v_sin_f32', 'v_cos_f32',
         'v_rcp_iflag_f32')


def v(n, c=1):
    return f'v{n}' if c == 1 else f'v[{n}:{n + c - 1}]'


def s(n, c=1):
    return f's{n}' if c == 1 else f's[{n}:{n + c - 1}]'


def regs_of(tok):
    tok = tok.strip()
    m = REG_RE.match(tok)
    if m:
        return {(m.group(2), int(m.group(3)))}
    m = RNG_RE.match(tok)
    if m:
        return {(m.group(2), i) for i in range(int(m.group(3)), int(m.group(4)) + 1)}
    if tok in ('vcc', 'vcc_lo', 'vcc_hi'):
        return {('x', 'vcc')}
    if tok in ('exec', 'exec_lo', 'exec_hi'):
        return {('x', 'exec')}
    if tok == 'm0':
        return {('x', 'm0')}
    if tok == 'scc':
        return {('x', 'scc')}
    return set()


class Inst:
    __slots__ = ('text', 'op', 'kind', 'rd', 'wr', 'srcA', 'srcB', 'srcC', 'passes', 'target', 'label',
                 'nop', 'vm', 'lgkm', 'storedata', 'comment', 'wide', 'auto')

    def __init__(self, text):
        self.text = text
        self.op = ''
        self.kind = ''
        self.rd = set()
        self.wr = set()
        self.srcA = self.srcB = self.srcC = set()
        self.passes = 0
        self.target = None
        self.label = None
        self.nop = 1
        self.vm = None
        self.lgkm = None
        self.storedata = set()
        self.wide = False
        self.auto = False


def split_ops(rest):
    out, depth, cur = [], 0, ''
    for ch in rest:
        if ch in '[(':
            depth += 1
        if ch in '])':
            depth -= 1
        if ch == ',' and depth == 0:
            out.append(cur.strip())
            cur = ''
        else:
            cur += ch
    if cur.strip():
        out.append(cur.strip())
    return out


def parse(text):
    t = text.split(';')[0].strip()
    ins = Inst(text)
    if t.endswith(':'):
        ins.kind = 'label'
        ins.label = t[:-1]
        ins.nop = 0
        return ins
    if t.startswith('.') or not t:
        ins.kind = 'directive'
        ins.nop = 0
        return ins
    parts = t.split(None, 1)
    op = parts[0]
    rest = parts[1] if len(parts) > 1 else ''
    ins.op = op
    ops = split_ops(rest)
    mods = []
    if ops:
        last = ops[-1].split()
        ops[-1] = last[0] if last else ''
        mods = last[1:]
    R = [regs_of(o) for o in ops]

    def allr(lst):
        o = set()
        for x in lst:
            o |= x
        return o

    if op.startswith('v_mfma'):
        ins.kind = 'mfma'
        ins.wr = R[0]
        ins.srcA, ins.srcB, ins.srcC = R[1], R[2], R[3]
        ins.rd = R[1] | R[2] | R[3]
        ins.passes = 8 if '32x32x16' in op else 4
        assert '32x32x16' in op or '16x16x32' in op
    elif op.startswith('v_cmp'):
        ins.kind = 'valu'
        ins.wr = R[0]
        ins.rd = allr(R[1:])
        assert not op.startswith('v_cmpx')
    elif op.startswith('v_readfirstlane') or op.startswith('v_readlane'):
        ins.kind = 'valu'
        ins.wr = R[0]
        ins.rd = allr(R[1:])
    elif op.startswith('v_permlane'):
        ins.kind = 'valu'
        ins.wr = R[0] | R[1]
        ins.rd = R[0] | R[1]
    elif op.startswith('v_add_co') or op.startswith('v_sub_co') or op.startswith('v_addc_co') or op.startswith('v_subb_co'):
        ins.kind = 'valu'
        ins.wr = R[0] | R[1]
        ins.rd = allr(R[2:])
    elif op.startswith('v_'):
        ins.kind = 'valu'
        ins.wr = R[0]
        ins.rd = allr(R[1:])
        if op.startswith('v_fmac') or op.startswith('v_dot2c') or op.startswith('v_pk_fmac') or op.startswith('v_writelane'):
            ins.rd |= R[0]
        if op.startswith('v_cndmask') and len(ops) == 3:
            ins.rd |= {('x', 'vcc')}
        if '_dpp' in op or any(m.startswith('row_') or m.startswith('quad_perm') for m in mods):
            ins.rd |= R[0]
            ins.kind = 'valu'
            ins.op = op + '#dpp'
    elif op.startswith('ds_read') or op.startswith('ds_bpermute') or op.startswith('ds_swizzle') or op.startswith('ds_permute'):
        ins.kind = 'dsr'
        ins.wr = R[0]
        ins.rd = allr(R[1:])
    elif op.startswith('ds_'):
        ins.kind = 'dsw'
        ins.rd = allr(R)
    elif op.startswith('buffer_load') or op.startswith('global_load'):
        if 'lds' in mods or '_lds_' in op:
            ins.kind = 'dma'
            ins.rd = allr(R) | {('x', 'm0')}
        else:
            ins.kind = 'vld'
            ins.wr = R[0]
            ins.rd = allr(R[1:])
            if 'd16' in op:
                ins.rd |= R[0]
    elif op.startswith('buffer_store') or op.startswith('global_store') or op.startswith('buffer_atomic') or op.startswith('global_atomic'):
        ins.kind = 'vst'
        ins.rd = allr(R)
        ins.storedata = R[0] if op.startswith('buffer') else R[1]
        ins.wide = 'x4' in op or 'x3' in op
        if 'atomic' in op and 'sc0' in mods:
            ins.kind = 'vld'
            ins.wr = R[0]
    elif op.startswith('buffer_wbl2') or op.startswith('buffer_inv'):
        ins.kind = 'vst'
    elif op.startswith('s_load') or op.startswith('s_memtime') or op.startswith('s_memrealtime') or op.startswith('s_buffer_load'):
        ins.kind = 'smem'
        ins.wr = R[0]
        ins.rd = allr(R[1:])
    elif op == 's_waitcnt':
        ins.kind = 'wait'
        m = re.search(r'vmcnt\((\d+)\)', t)
        ins.vm = int(m.group(1)) if m else None
        m = re.search(r'lgkmcnt\((\d+)\)', t)
        ins.lgkm = int(m.group(1)) if m else None
    elif op == 's_nop':
        ins.kind = 'nop'
        ins.nop = int(ops[0], 0) + 1
    elif op == 's_barrier':
        ins.kind = 'barrier'
    elif op == 's_endpgm':
        ins.kind = 'end'
    elif op == 's_branch':
        ins.kind = 'jump'
        ins.target = ops[0]
    elif op.startswith('s_cbranch'):
        ins.kind = 'cbranch'
        ins.target = ops[0]
        if 'vcc' in op:
            ins.rd = {('x', 'vcc')}
    elif op.startswith('s_cmp') or op.startswith('s_bitcmp'):
        ins.kind = 'salu'
        ins.rd = allr(R)
    elif op in ('s_setprio', 's_sleep', 's_setreg_b32', 's_setreg_imm32_b32', 's_set_gpr_idx_off'):
        ins.kind = 'salu'
    elif op == 's_set_gpr_idx_on':
        ins.kind = 'salu'
        ins.rd = R[0]
        ins.wr = {('x', 'm0')}
    elif op.startswith('s_'):
        ins.kind = 'salu'
        ins.wr = R[0]
        ins.rd = allr(R[1:])
        if 'saveexec' in op:
            ins.wr |= {('x', 'exec')}
        if op.startswith('s_addk') or op.startswith('s_mulk'):
            ins.rd |= R[0]
    else:
        raise ValueError('unknown op: ' + text)
    return ins


def isv(r):
    return r[0] in ('v', 'a')


class Prog:
    def __init__(self):
        self.ins = []
        self.nlabel = 0

    def e(self, text):
        for line in text.split('\n'):
            line = line.strip()
            if line:
                self.ins.append(parse(line))

    def ext(self, lst):
        for x in lst:
            if isinstance(x, (list, tuple)):
                self.ext(x)
            else:
                self.e(x)

    def newlabel(self, base='L'):
        self.nlabel += 1
        return f'{base}_{self.nlabel}'

    def label(self, name):
        self.e(name + ':')

    def _cfg(self):
        ins = self.ins
        lab = {x.label: i for i, x in enumerate(ins) if x.kind == 'label'}
        succ = [[] for _ in ins]
        for i, x in enumerate(ins):
            if x.kind == 'end':
                continue
            if x.kind == 'jump':
                succ[i].append(lab[x.target])
                continue
            if x.kind == 'cbranch':
                succ[i].append(lab[x.target])
            if i + 1 < len(ins):
                succ[i].append(i + 1)
        pred = [[] for _ in ins]
        for i, sl in enumerate(succ):
            for j in sl:
                pred[j].append(i)
        return succ, pred

    def auto_waits(self):
        ins = self.ins
        succ, pred = self._cfg()
        n = len(ins)
        instate = [None] * n
        instate[0] = ({}, {})
        need = [None] * n
        work = [0]
        inwork = {0}

        def transfer(i, st):
            vm, lg = dict(st[0]), dict(st[1])
            x = ins[i]
            touched = x.rd | x.wr
            wv = wl = None
            for r in touched:
                if r in vm:
                    if x.kind == 'vld' and r in x.wr and (r not in x.rd or 'd16' in x.op):
                        continue
                    wv = vm[r] if wv is None else min(wv, vm[r])
                if r in lg:
                    if x.kind == 'dsr' and r in x.wr and r not in x.rd:
                        continue
                    wl = lg[r] if wl is None else min(wl, lg[r])
            if wv is not None:
                wv = min(wv, 63)
                vm = {r: a for r, a in vm.items() if a < wv}
            if wl is not None:
                wl = min(wl, 15)
                lg = {r: a for r, a in lg.items() if a < wl}
            if x.kind == 'wait':
                if x.vm is not None:
                    vm = {r: a for r, a in vm.items() if a < x.vm}
                if x.lgkm is not None:
                    lg = {r: a for r, a in lg.items() if a < x.lgkm}
            elif x.kind in ('vld', 'vst', 'dma'):
                vm = {r: a + 1 for r, a in vm.items()}
                if x.kind == 'vld':
                    for r in x.wr:
                        vm[r] = 0
            elif x.kind in ('dsr', 'dsw'):
                lg = {r: a + 1 for r, a in lg.items()}
                if x.kind == 'dsr':
                    for r in x.wr:
                        lg[r] = 0
            elif x.kind == 'smem':
                lg = {r: 0 for r in lg}
                for r in x.wr:
                    lg[r] = 0
                lg[('x', 'smem')] = 0
            if ('x', 'smem') in lg and x.kind in ('dsr', 'dsw'):
                lg = {r: 0 for r in lg}
            return (vm, lg), (wv, wl)

        def merge(a, b):
            if a is None:
                return b, True
            ch = False
            out = []
            for da, db in zip(a, b):
                d = dict(da)
                for r, x in db.items():
                    if r not in d or x < d[r]:
                        d[r] = x
                        ch = True
                out.append(d)
            return tuple(out), ch

        while work:
            i = work.pop()
            inwork.discard(i)
            out, w = transfer(i, instate[i])
            need[i] = w
            for j in succ[i]:
                m, ch = merge(instate[j], out)
                if ch:
                    instate[j] = m
                    if j not in inwork:
                        work.append(j)
                        inwork.add(j)
        new = []
        for i, x in enumerate(ins):
            w = need[i]
            if w and (w[0] is not None or w[1] is not None):
                t = 's_waitcnt'
                if w[0] is not None:
                    t += f' vmcnt({w[0]})'
                if w[1] is not None:
                    t += f' lgkmcnt({w[1]})'
                y = parse(t)
                y.auto = True
                new.append(y)
            new.append(x)
        self.ins = new

    @staticmethod
    def _required(p, c):
        req = 0
        pk, ck = p.kind, c.kind
        if pk == 'valu':
            wv = {r for r in p.wr if isv(r)}
            ws = p.wr - wv
            if ck == 'mfma' and wv & c.rd:
                req = max(req, 2)
            if ck == 'valu':
                if c.op.startswith('v_permlane') and wv & c.rd:
                    req = max(req, 2)
                if c.op.endswith('#dpp') and wv & c.rd:
                    req = max(req, 2)
                if (c.op.startswith('v_readfirstlane') or c.op.startswith('v_readlane')) and wv & c.rd:
                    req = max(req, 1)
                if ws & c.rd:
                    req = max(req, 4 if c.op.startswith('v_readlane') or c.op.startswith('v_writelane') else 2)
            if p.op.split('_e')[0] in TRANS and ck in ('valu', 'dsw', 'vst', 'dsr', 'vld', 'dma') and wv & (c.rd | c.wr):
                req = max(req, 1)
            if ck in ('vld', 'vst', 'dma') and ws & c.rd:
                req = max(req, 5)
            if ck == 'cbranch' and ws & c.rd:
                req = max(req, 1)
            if ck == 'salu' and ws & c.rd:
                req = max(req, 1)
        elif pk == 'mfma':
            P = p.passes
            if ck == 'mfma':
                if p.wr & c.srcC:
                    if p.wr == c.srcC and c.passes == P:
                        pass
                    else:
                        req = max(req, P + 2)
                if p.wr & (c.srcA | c.srcB):
                    req = max(req, P + 4)
                if p.wr & c.wr and not (p.wr == c.srcC):
                    req = max(req, P + 2)
            elif ck in ('valu', 'dsr', 'dsw', 'vld', 'vst', 'dma'):
                if p.wr & (c.rd | c.wr):
                    req = max(req, P + 4)
                if ck == 'valu' and p.srcC & c.wr:
                    req = max(req, P - 1)
        elif pk == 'salu':
            if ('x', 'm0') in p.wr and ck == 'dma':
                req = max(req, 1)
        elif pk == 'vst':
            if p.wide and p.storedata & c.wr:
                req = max(req, 2)
        return req

    def fix_hazards(self, maxd=13):
        changed = True
        while changed:
            changed = False
            ins = self.ins
            succ, pred = self._cfg()
            add = {}
            for i, c in enumerate(ins):
                if c.kind in ('label', 'directive', 'nop', 'wait', 'barrier', 'end', 'jump'):
                    continue
                best = 0
                stack = [(j, 0) for j in pred[i]]
                seen = {}
                while stack:
                    j, d = stack.pop()
                    if d >= maxd:
                        continue
                    if j in seen and seen[j] <= d:
                        continue
                    seen[j] = d
                    p = ins[j]
                    r = self._required(p, c) if p.kind in ('valu', 'mfma', 'salu', 'vst') else 0
                    if r > d:
                        best = max(best, r - d)
                    nd = d + p.nop + add.get(j, 0)
                    for k in pred[j]:
                        stack.append((k, nd))
                if best > 0:
                    add[i] = best
            if add:
                new = []
                for i, x in enumerate(ins):
                    if i in add:
                        k = add[i]
                        y = parse(f's_nop {k - 1}')
                        y.auto = True
                        new.append(y)
                    new.append(x)
                self.ins = new
                changed = True

    def finalize(self):
        self.auto_waits()
        self.fix_hazards()

    def text(self):
        out = []
        for x in self.ins:
            if x.kind in ('label',):
                out.append(x.text)
            else:
                out.append('  ' + x.text + ('   ; auto' if x.auto else ''))
        return '\n'.join(out) + '\n'

    def max_regs(self):
        mv = ms = -1
        for x in self.ins:
            for r in x.rd | x.wr:
                if r[0] == 'v':
                    mv = max(mv, r[1])
                elif r[0] == 's':
                    ms = max(ms, r[1])
        return mv + 1, ms + 1

    def stats(self):
        from collections import Counter
        c = Counter(x.kind for x in self.ins)
        c['auto_nop'] = sum(1 for x in self.ins if x.auto and x.kind == 'nop')
        c['auto_wait'] = sum(1 for x in self.ins if x.auto and x.kind == 'wait')
        return dict(c)


def interleave(main, fillers, start=0, end=None):
    n = len(main)
    end = n if end is None else end
    slots = [[] for _ in range(n)]
    g = end - start
    for k, f in enumerate(fillers):
        slots[start + (k * g) // len(fillers)].append(f)
    return slots


def kernel_text(name, prog, lds_unused=0):
    nv, ns = prog.max_regs()
    nv = max(nv, 8)
    acc = (nv + 3) // 4 * 4
    t = f'.text\n.globl {name}\n.p2align 8\n.type {name},@function\n{name}:\n'
    t += prog.text()
    d = f'''.section .rodata,"a"
.p2align 6
.amdhsa_kernel {name}
  .amdhsa_next_free_vgpr {nv}
  .amdhsa_next_free_sgpr {max(ns, 16)}
  .amdhsa_accum_offset {acc}
  .amdhsa_group_segment_fixed_size 0
  .amdhsa_kernarg_size 104
  .amdhsa_user_sgpr_count 2
  .amdhsa_user_sgpr_kernarg_segment_ptr 1
  .amdhsa_system_sgpr_workgroup_id_x 1
  .amdhsa_float_denorm_mode_32 3
.end_amdhsa_kernel
'''
    return t, d


class Stamps:
    def __init__(self, p, vreg, stmp, enabled):
        self.p, self.vreg, self.stmp, self.en, self.n = p, vreg, stmp, enabled, 0

    def start(self):
        if not self.en:
            return
        p = self.p
        p.e(f'v_mov_b32 {v(self.vreg)}, 0')
        p.e(f's_memrealtime {s(self.stmp,2)}')
        p.e('s_waitcnt lgkmcnt(0)')
        p.e(f'v_writelane_b32 {v(self.vreg)}, {s(self.stmp)}, 30')
        self.stamp()

    def stamp(self, idx=None):
        if not self.en:
            return
        p = self.p
        if idx is None:
            idx = self.n
        self.n = max(self.n, idx + 1)
        p.e(f's_memtime {s(self.stmp,2)}')
        p.e(f's_memrealtime {s(self.stmp+4,2)}')
        p.e('s_waitcnt lgkmcnt(0)')
        p.e(f'v_writelane_b32 {v(self.vreg)}, {s(self.stmp)}, {idx}')
        p.e(f'v_writelane_b32 {v(self.vreg)}, {s(self.stmp+4)}, {idx+32}')

    def stamp_dyn(self, sidx):
        if not self.en:
            return
        p = self.p
        p.e(f's_memtime {s(self.stmp,2)}')
        p.e(f's_memrealtime {s(self.stmp+4,2)}')
        p.e('s_waitcnt lgkmcnt(0)')
        p.e(f's_mov_b32 {s(self.stmp+1)}, m0')
        p.e(f's_mov_b32 m0, {s(sidx)}')
        p.e(f'v_writelane_b32 {v(self.vreg)}, {s(self.stmp)}, m0')
        p.e(f's_add_u32 m0, {s(sidx)}, 32')
        p.e(f'v_writelane_b32 {v(self.vreg)}, {s(self.stmp+4)}, m0')
        p.e(f's_mov_b32 m0, {s(self.stmp+1)}')

    def flush(self, srd, swave, base, n, vt):
        if not self.en:
            return
        p = self.p
        p.e('s_waitcnt vmcnt(0)')
        p.e(f's_memrealtime {s(self.stmp,2)}')
        p.e('s_waitcnt lgkmcnt(0)')
        p.e(f'v_writelane_b32 {v(self.vreg)}, {s(self.stmp)}, 29')
        p.e(f's_mov_b32 {s(self.stmp)}, {n}')
        p.e(f'v_writelane_b32 {v(self.vreg)}, {s(self.stmp)}, 31')
        p.e(f's_lshl_b32 {s(self.stmp)}, s2, 3')
        p.e(f's_add_u32 {s(self.stmp)}, {s(self.stmp)}, {s(swave)}')
        p.e(f's_lshl_b32 {s(self.stmp)}, {s(self.stmp)}, 8')
        p.e(f's_add_u32 {s(self.stmp)}, {s(self.stmp)}, {base}')
        p.e(f'v_mbcnt_lo_u32_b32 {v(vt)}, -1, 0')
        p.e(f'v_mbcnt_hi_u32_b32 {v(vt)}, -1, {v(vt)}')
        p.e(f'v_lshlrev_b32 {v(vt)}, 2, {v(vt)}')
        p.e(f'buffer_store_dword {v(self.vreg)}, {v(vt)}, {s(srd,4)}, {s(self.stmp)} offen')


def code_prefetch(p, vdst, vtmp, sp, start, end, tag, shift=6):
    p.e(f's_getpc_b64 {s(sp,2)}')
    p.label(f'{tag}_PC')
    p.e(f'v_lshlrev_b32 {v(vtmp)}, {shift}, v0')
    p.e(f's_add_u32 {s(sp)}, {s(sp)}, {start}-{tag}_PC')
    p.e(f's_addc_u32 {s(sp+1)}, {s(sp+1)}, -1')
    p.e(f'v_min_u32 {v(vtmp)}, {end}-{start}-4, {v(vtmp)}')
    p.e(f'global_load_dword {v(vdst)}, {v(vtmp)}, {s(sp,2)}')
```

```python
from asmlib import *
from layout import *
import struct, os
SM = os.environ.get('SM', '')
SM = (' ' + SM.replace('_', ' ')) if SM else ''
NOST = int(os.environ.get('NOST', '0'))
VMW = int(os.environ.get('VMW', '16'))
PF = int(os.environ.get('PF', '3'))
PFS = int(os.environ.get('PFS', '7'))


def f32hex(x):
    return '0x%08x' % struct.unpack('<I', struct.pack('<f', x))[0]


V_LANE = 1
V_L16 = 2
V_XRD = 8
V_WRD = 9
V_DX = 16
V_DW = 18
V_DX2 = 20
V_DW2 = 22
V_XF = 24
V_WF = 40
V_ST = 88
V_T = 96
V_PK = 96
V_ACC = 128
V_ACC2 = 160

S_W = 3
S_RB = 4
S_CT = 5
S_ISV = 6
S_OUT = 7
S_PTR = 8
S_SX = 36
S_SW = 40
S_WS = 44
S_SX2 = 48
S_SW2 = 52
S_XOFF = 56
S_WOFF = 57
S_WINC = 58
S_WINC2 = 59
S_M0 = 60
S_DELTA = 61
S_CNT = 62
S_RSLOT = 63
S_T = 64
S_C2 = 80
S_ROWB = 81
S_NTB = 82
S_IDX = 83
S_PHI = 84
S_M0END = 88
S_OINC = 34
S_OX = 35

NSLOT = 5
SLOT = 32768
OOB = 0x7FF00000
ADJ = 4096


def ptr(name):
    return S_PTR + KA[name] // 4


def srd(p, dst, name, size):
    p.e(f's_mov_b32 {s(dst)}, {s(ptr(name))}')
    p.e(f's_mov_b32 {s(dst+1)}, {s(ptr(name)+1)}')
    p.e(f's_mov_b32 {s(dst+2)}, {size}')
    p.e(f's_mov_b32 {s(dst+3)}, 0x00020000')


def dma_lines():
    L = []
    L.append([f's_mov_b32 m0, {s(S_M0)}',
              f's_add_u32 {s(S_M0)}, {s(S_M0)}, {SLOT}',
              f'buffer_load_dwordx4 {v(V_DX)}, {s(S_SX,4)}, {s(S_XOFF)} offen lds'])
    L.append([f'buffer_load_dwordx4 {v(V_DX+1)}, {s(S_SX,4)}, {s(S_XOFF)} offen offset:1024 lds',
              f's_add_u32 {s(S_XOFF)}, {s(S_XOFF)}, 64',
              f's_cmp_ge_u32 {s(S_M0)}, {NSLOT*SLOT}'])
    L.append([f'buffer_load_dwordx4 {v(V_DW)}, {s(S_SW,4)}, {s(S_WOFF)} offen offset:2048 lds',
              f's_cselect_b32 {s(S_M0)}, {s(S_M0END)}, {s(S_M0)}'])
    L.append([f'buffer_load_dwordx4 {v(V_DW+1)}, {s(S_SW,4)}, {s(S_WOFF)} offen offset:3072 lds',
              f's_add_u32 {s(S_WOFF)}, {s(S_WOFF)}, {s(S_WINC)}'])
    return L


def xread(st):
    return f'ds_read_b128 {v(V_XF+4*(st%4),4)}, {v(V_XRD)} offset:{(st>>1)*4096+(st&1)*1024}'


def wreads(fs, NT):
    return [f'ds_read_b64_tr_b16 {v(V_WF+fs*24+4*nt+2*j,2)}, {v(V_WRD+nt)} offset:{j*4096}'
            for nt in range(NT) for j in range(2)]


def stage(p, fs, NS, NT, orient, accb, extra=None):
    def mf(st, nt):
        ai = st * NT + nt if orient == 0 else ((st >> 1) * NT + nt) * 2 + (st & 1)
        acc = v(accb + 4 * ai, 4)
        x = v(V_XF + 4 * (st % 4), 4)
        w = v(V_WF + fs * 24 + 4 * nt, 4)
        a, bb = (w, x) if orient == 0 else (x, w)
        return f'v_mfma_f32_16x16x32_bf16 {acc}, {a}, {bb}, {acc}'
    upd = [f's_add_u32 {s(S_RSLOT)}, {s(S_RSLOT)}, {SLOT}',
           f's_cmp_ge_u32 {s(S_RSLOT)}, {NSLOT*SLOT}',
           f's_cselect_b32 {s(S_RSLOT)}, 0, {s(S_RSLOT)}',
           f's_cselect_b32 {s(S_DELTA)}, {-(NSLOT-1)*SLOT}, {s(S_T+15)}']
    au = [f'v_add_u32 {v(r)}, {s(S_DELTA)}, {v(r)}' for r in [V_WRD + i for i in range(NT)] + [V_XRD]]
    pre = [mf(st, nt) for st in range(NS - 2) for nt in range(NT)]
    slots = [[] for _ in pre]
    slots[0] += [xread(2)] + upd
    slots[1] += [xread(3)]
    for st in range(4, NS):
        slots[(st - 3) * NT].append(xread(st))
    for i, a in enumerate(au[:-1]):
        slots[2 + i].append(a)
    slots[max((NS - 4) * NT + 1, 2 + NT)].append(au[-1])
    for m, a in zip(pre, slots):
        p.e(m)
        p.ext(a)
    p.e(f's_waitcnt vmcnt({VMW}) lgkmcnt(0)')
    p.e('s_barrier')
    post = [mf(st, nt) for st in range(NS - 2, NS) for nt in range(NT)]
    n = len(post)
    wr = wreads(fs ^ 1, NT)
    rd = [xread(0)] + wr[:4] + [xread(1)] + wr[4:]
    slots = interleave(post, rd, 0, n - 2)
    d = interleave(post, dma_lines(), 0, n - 2)
    for i, (m, a, b) in enumerate(zip(post, slots, d)):
        p.e(m)
        p.ext(a)
        p.ext(b)
        if extra and i == n - 2:
            extra()


def first_reads(p, NT):
    wr = wreads(0, NT)
    p.ext([xread(0)] + wr + [xread(1)])


def read_addrs(p, NT):
    t = V_ST
    p.e(f's_lshl_b32 {s(S_T)}, {s(S_ROWB)}, 7')
    p.e(f's_add_u32 {s(S_T)}, {s(S_T)}, {s(S_RSLOT)}')
    p.e(f'v_and_b32 {v(t)}, 15, {v(V_LANE)}')
    p.e(f'v_lshlrev_b32 {v(t+1)}, 6, {v(t)}')
    p.e(f'v_add_u32 {v(t+1)}, {s(S_T)}, {v(t+1)}')
    p.e(f'v_bfe_u32 {v(t)}, {v(V_LANE)}, 2, 2')
    p.e(f'v_lshrrev_b32 {v(t+3)}, 4, {v(V_LANE)}')
    p.e(f'v_and_b32 {v(t+2)}, 2, {v(t)}')
    p.e(f'v_xor_b32 {v(t+2)}, {v(t+2)}, {v(t+3)}')
    p.e(f'v_lshl_add_u32 {v(V_XRD)}, {v(t+2)}, 4, {v(t+1)}')
    p.e(f'v_lshlrev_b32 {v(t+1)}, 13, {v(t+3)}')
    p.e(f'v_lshl_add_u32 {v(t+1)}, {v(t)}, 9, {v(t+1)}')
    p.e(f'v_and_b32 {v(t+2)}, 3, {v(V_LANE)}')
    p.e(f'v_lshl_add_u32 {v(t+1)}, {v(t+2)}, 3, {v(t+1)}')
    p.e(f's_add_u32 {s(S_T)}, {s(S_RSLOT)}, 2048')
    p.e(f'v_add_u32 {v(t+1)}, {s(S_T)}, {v(t+1)}')
    p.e(f'v_bfe_u32 {v(t+2)}, {v(V_LANE)}, 2, 3')
    for nt in range(NT):
        p.e(f's_add_u32 {s(S_T)}, {s(S_NTB)}, {nt}')
        p.e(f'v_xor_b32 {v(t+4)}, {s(S_T)}, {v(t+2)}')
        p.e(f'v_lshl_add_u32 {v(V_WRD+nt)}, {v(t+4)}, 5, {v(t+1)}')


def dma_x_offs(p, dst, stride):
    t = V_T
    p.e(f's_lshl_b32 {s(S_T)}, {s(S_RB)}, 8')
    p.e(f's_lshl_b32 {s(S_T+1)}, {s(S_W)}, 5')
    p.e(f's_add_u32 {s(S_T)}, {s(S_T)}, {s(S_T+1)}')
    p.e(f'v_lshrrev_b32 {v(t)}, 2, {v(V_LANE)}')
    p.e(f'v_add_u32 {v(t)}, {s(S_T)}, {v(t)}')
    p.e(f'v_mul_u32_u24 {v(t)}, {stride}, {v(t)}')
    p.e(f'v_and_b32 {v(t+1)}, 3, {v(V_LANE)}')
    p.e(f'v_lshrrev_b32 {v(t+2)}, 4, {v(V_LANE)}')
    p.e(f'v_and_b32 {v(t+2)}, 2, {v(t+2)}')
    p.e(f'v_xor_b32 {v(t+1)}, {v(t+1)}, {v(t+2)}')
    p.e(f'v_lshl_add_u32 {v(dst)}, {v(t+1)}, 4, {v(t)}')
    p.e(f'v_add_u32 {v(dst+1)}, {16*stride-1024}, {v(dst)}')


S_PF = 96
S_PFO = 100
S_PFI = 101
S_PFSZ = 89


PFL = int(os.environ.get('PFL', '4'))
PFT = os.environ.get('PFT', '64,64,88,40,0,0')


def in_prefetch_setup(p):
    cnt = [int(x) for x in PFT.split(',')]
    tab = [('B_x', 2048*1280), ('A_x', 2048*1280), ('B_w_q', 640*8192), ('A_wqkv', 640*3840), ('B_w_o', 4096*1280),
           ('A_wo', 640*1280)]
    tab = [(n, sz, k, k * 8 * PFL * 128) for (n, sz), k in zip(tab, cnt) if k]
    R = S_PF
    p.e(f's_mov_b32 {s(R+3)}, 0x00020000')
    p.e(f's_mov_b32 {s(R+2)}, 0')
    p.e(f's_mov_b32 {s(S_PFO)}, 0')
    starts = [sum(t[2] for t in tab[:i]) for i in range(len(tab) + 1)]
    assert starts[-1] == 256
    for i in range(len(tab) - 1, -1, -1):
        n, sz, k, inc = tab[i]
        op = 's_mov_b32' if i == len(tab) - 1 else 's_cselect_b32'
        def e(d, val):
            p.e(f'{op} {s(d)}, {val}' + ('' if i == len(tab) - 1 else f', {s(d)}'))
        if i != len(tab) - 1:
            p.e(f's_cmp_lt_u32 s2, {starts[i+1]}')
        e(R, s(ptr(n)))
        e(R + 1, s(ptr(n) + 1))
        e(S_PFSZ, sz)
        e(S_PFI, inc)
        e(S_T, starts[i])
    p.e(f'v_mov_b32 {v(5)}, {OOB}')
    nd = 4
    if PF & 8:
        p.e(f's_lshl3_add_u32 {s(S_T+1)}, s2, {s(S_W)}')
        p.e(f's_lshl_b32 {s(S_T+1)}, {s(S_T+1)}, 10')
        p.e(f'v_lshlrev_b32 {v(6)}, 7, {v(V_LANE)}')
        p.e(f'v_cmp_gt_u32 vcc, 8, {v(V_LANE)}')
        p.e(f'v_cndmask_b32 {v(6)}, {v(5)}, {v(6)}, vcc')
        p.e(f'buffer_load_dword {v(4)}, {v(6)}, {s(S_SX,4)}, {s(S_T+1)} offen')
        nd = 3
    p.e(f's_sub_u32 {s(S_T)}, s2, {s(S_T)}')
    p.e(f's_lshl3_add_u32 {s(S_T)}, {s(S_T)}, {s(S_W)}')
    p.e(f's_mul_i32 {s(S_T)}, {s(S_T)}, {PFL}')
    p.e(f'v_add_lshl_u32 {v(6)}, {s(S_T)}, {v(V_LANE)}, 7')
    p.e(f'v_cmp_gt_u32 vcc, {PFL}, {v(V_LANE)}')
    p.e(f'v_cndmask_b32 {v(6)}, {v(5)}, {v(6)}, vcc')
    for i in range(nd):
        p.e(f'buffer_load_dword {v(4)}, {v(6)}, {s(R,4)}, {s(S_PFO)} offen')
    if PF & 2:
        p.e(f's_mov_b32 {s(R+2)}, {s(S_PFSZ)}')


def in_prefetch(p):
    p.e(f'buffer_load_dword {v(4)}, {v(6)}, {s(S_PF,4)}, {s(S_PFO)} offen')
    p.e(f's_add_u32 {s(S_PFO)}, {s(S_PFO)}, {s(S_PFI)}')


def build(name='k1_kernel', a2=True, stamps=False):
    p = Prog()
    st_ = Stamps(p, 7, 90, stamps)
    p.e('s_cmp_ge_u32 s2, 256')
    p.e('s_cbranch_scc1 K1_END')
    st_.start()
    p.e(f's_load_dwordx16 {s(S_PTR,16)}, s[0:1], 0')
    p.e(f's_load_dwordx8 {s(S_PTR+16,8)}, s[0:1], 64')
    p.e(f's_load_dwordx2 {s(S_PTR+24,2)}, s[0:1], 96')
    npf = 0
    if PF & 1:
        code_prefetch(p, 4, 6, S_PHI, 'k1_kernel', 'K3_END', 'K1')
        npf += 1
    p.e(f'v_lshrrev_b32 {v(2)}, 6, v0')
    p.e(f'v_and_b32 {v(V_LANE)}, 63, v0')
    p.e(f'v_readfirstlane_b32 {s(S_W)}, {v(2)}')
    p.e(f's_and_b32 {s(S_T)}, s2, 7')
    p.e(f's_bfe_u32 {s(S_RB)}, s2, 0x30003')
    p.e(f's_bfe_u32 {s(S_T+3)}, s2, 0x10006')
    p.e(f's_lshl_b32 {s(S_CT)}, {s(S_T)}, 1')
    p.e(f's_add_u32 {s(S_CT)}, {s(S_CT)}, {s(S_T+3)}')
    p.e(f's_lshr_b32 {s(S_ISV)}, s2, 7')
    dma_x_offs(p, V_DX, 1024)
    t = V_T
    p.e(f'v_lshrrev_b32 {v(t)}, 5, {v(V_LANE)}')
    p.e(f's_lshl_b32 {s(S_T)}, {s(S_W)}, 2')
    p.e(f'v_add_u32 {v(t+8)}, {s(S_T)}, {v(t)}')
    p.e(f'v_and_b32 {v(t+2)}, 31, {v(V_LANE)}')
    p.e(f'v_lshlrev_b32 {v(t+3)}, 1, {v(t)}')
    p.e(f's_and_b32 {s(S_T)}, {s(S_T)}, 8')
    p.e(f'v_xor_b32 {v(t+6)}, {v(t+2)}, {v(t+3)}')
    p.e(f'v_xor_b32 {v(t+6)}, {s(S_T)}, {v(t+6)}')
    p.e(f'v_xor_b32 {v(t+7)}, 4, {v(t+6)}')
    p.e(f'v_lshlrev_b32 {v(t+4)}, 13, {v(t+8)}')
    p.e(f's_lshl_b32 {s(S_T)}, {s(S_CT)}, 9')
    p.e(f's_add_u32 {s(S_T)}, {s(S_T)}, {ADJ-2048}')
    p.e(f'v_add_u32 {v(t+4)}, {s(S_T)}, {v(t+4)}')
    p.e(f'v_lshl_add_u32 {v(V_DW)}, {v(t+6)}, 4, {v(t+4)}')
    p.e(f'v_lshl_add_u32 {v(V_DW+1)}, {v(t+7)}, 4, {v(t+4)}')
    p.e(f'v_add_u32 {v(V_DW+1)}, {16384-1024}, {v(V_DW+1)}')
    p.e(f's_lshl_b32 {s(S_M0)}, {s(S_W)}, 12')
    p.e(f's_mov_b32 {s(S_M0END)}, {s(S_M0)}')
    p.e(f's_mov_b32 {s(S_XOFF)}, 0')
    p.e(f's_mov_b32 {s(S_WOFF)}, 0')
    p.e(f's_mov_b32 {s(S_WINC)}, {32*8192}')
    p.e(f's_mov_b32 {s(S_SW+2)}, {512*8192+ADJ}')
    p.e(f's_mov_b32 {s(S_SW+3)}, 0x00020000')
    p.e(f's_cmp_eq_u32 {s(S_ISV)}, 0')
    p.e('s_waitcnt lgkmcnt(0)')
    srd(p, S_SX, 'B_c_kv', 2048 * 1024)
    p.e(f's_cselect_b32 {s(S_SW)}, {s(ptr("B_w_uk"))}, {s(ptr("B_w_uv"))}')
    p.e(f's_cselect_b32 {s(S_SW+1)}, {s(ptr("B_w_uk")+1)}, {s(ptr("B_w_uv")+1)}')
    p.e(f's_sub_u32 {s(S_SW)}, {s(S_SW)}, {ADJ}')
    p.e(f's_subb_u32 {s(S_SW+1)}, {s(S_SW+1)}, 0')
    p.ext(dma_lines())
    p.ext(dma_lines())
    p.e(f's_mov_b32 {s(S_RSLOT)}, 0')
    p.e(f's_mov_b32 {s(S_T+15)}, {SLOT}')
    p.e(f's_and_b32 {s(S_T)}, {s(S_W)}, 1')
    p.e(f's_lshl_b32 {s(S_ROWB)}, {s(S_T)}, 7')
    p.e(f's_and_b32 {s(S_NTB)}, {s(S_W)}, 6')
    p.e(f's_lshl_b32 {s(S_NTB)}, {s(S_NTB)}, 1')
    read_addrs(p, 4)
    for i in range(64):
        p.e(f'v_mov_b32 {v(V_ACC+i)}, 0')
    p.ext(dma_lines())
    for i in range(64, 128):
        p.e(f'v_mov_b32 {v(V_ACC+i)}, 0')
    p.ext(dma_lines())
    srd(p, S_WS, 'ws', WS_SIZE)
    p.e(f's_lshr_b32 {s(S_T)}, {s(S_W)}, 2')
    p.e(f's_lshl_b32 {s(S_T+1)}, {s(S_CT)}, 1')
    p.e(f's_add_u32 {s(S_T)}, {s(S_T)}, {s(S_T+1)}')
    p.e(f's_lshl_b32 {s(S_OUT)}, {s(S_T)}, 19')
    p.e(f's_lshl_b32 {s(S_T)}, {s(S_RB)}, 16')
    p.e(f's_add_u32 {s(S_OUT)}, {s(S_OUT)}, {s(S_T)}')
    p.e(f's_lshl_b32 {s(S_T+1)}, {s(S_ROWB)}, 8')
    p.e(f's_add_u32 {s(S_OUT)}, {s(S_OUT)}, {s(S_T+1)}')
    p.e(f's_bfe_u32 {s(S_T)}, {s(S_W)}, 0x10001')
    p.e(f's_add_u32 {s(S_T+1)}, {s(S_ISV)}, 11')
    p.e(f's_lshl_b32 {s(S_T)}, {s(S_T)}, {s(S_T+1)}')
    p.e(f's_add_u32 {s(S_OUT)}, {s(S_OUT)}, {s(S_T)}')
    p.e(f's_lshr_b32 {s(S_OINC)}, 4096, {s(S_ISV)}')
    p.e(f's_lshl_b32 {s(S_OX)}, {s(S_ISV)}, 12')
    p.e(f's_lshl_b32 {s(S_T)}, {s(S_ISV)}, 24')
    p.e(f's_add_u32 {s(S_OUT)}, {s(S_OUT)}, {s(S_T)}')
    p.e(f's_add_u32 {s(S_OUT)}, {s(S_OUT)}, {WS_K}')
    p.e(f's_and_b32 {s(S_T)}, s2, 1')
    p.e(f's_lshl_b32 {s(S_T)}, {s(S_T)}, 2')
    p.e(f's_bfe_u32 {s(S_T+1)}, s2, 0x20003')
    p.e(f's_add_u32 {s(S_RB)}, {s(S_T)}, {s(S_T+1)}')
    p.e(f's_bfe_u32 {s(S_T)}, s2, 0x20001')
    p.e(f's_lshl_b32 {s(S_T)}, {s(S_T)}, 3')
    p.e(f's_lshr_b32 {s(S_T+1)}, s2, 5')
    p.e(f's_add_u32 {s(S_C2)}, {s(S_T)}, {s(S_T+1)}')
    dma_x_offs(p, V_DX2, 1280)
    B0, B1, B2, B3, LIM, STR = S_T + 2, S_T + 3, S_T + 4, S_T + 5, S_T + 6, S_T + 7
    p.e(f's_cmp_lt_u32 {s(S_C2)}, 22')
    p.e(f's_cselect_b32 {s(S_SX2)}, {s(ptr("B_x"))}, {s(ptr("A_x"))}')
    p.e(f's_cselect_b32 {s(S_SX2+1)}, {s(ptr("B_x")+1)}, {s(ptr("A_x")+1)}')
    p.e(f's_cselect_b32 {s(S_SW2)}, {s(ptr("B_w_q"))}, {s(ptr("A_wqkv"))}')
    p.e(f's_cselect_b32 {s(S_SW2+1)}, {s(ptr("B_w_q")+1)}, {s(ptr("A_wqkv")+1)}')
    p.e(f's_movk_i32 {s(STR)}, 3840')
    p.e(f's_cselect_b32 {s(STR)}, 8192, {s(STR)}')
    p.e(f's_cselect_b32 {s(S_T)}, 0, 22')
    p.e(f's_mul_i32 {s(S_SW2+2)}, {s(STR)}, 640')
    p.e(f's_add_u32 {s(S_SW2+2)}, {s(S_SW2+2)}, {ADJ}')
    p.e(f's_sub_u32 {s(S_SW2)}, {s(S_SW2)}, {ADJ}')
    p.e(f's_subb_u32 {s(S_SW2+1)}, {s(S_SW2+1)}, 0')
    p.e(f's_sub_u32 {s(S_T)}, {s(S_C2)}, {s(S_T)}')
    p.e(f's_mul_i32 {s(B0)}, {s(S_T)}, 384')
    p.e(f's_mov_b32 {s(B1)}, {s(B0)}')
    p.e(f's_mov_b32 {s(B2)}, {s(B0)}')
    p.e(f's_mov_b32 {s(B3)}, {s(B0)}')
    p.e(f's_cmp_eq_u32 {s(S_C2)}, 21')
    p.e(f's_cselect_b32 {s(LIM)}, 8, 24')
    p.e(f's_cmp_lt_u32 {s(S_C2)}, 24')
    p.e('s_cbranch_scc1 K1_NOTKV')
    p.e(f's_sub_u32 {s(S_T)}, {s(S_C2)}, 24')
    p.e(f's_mul_i32 {s(S_T+1)}, {s(S_T)}, 160')
    p.e(f's_add_u32 {s(B0)}, {s(S_T+1)}, 1280')
    p.e(f's_add_u32 {s(B2)}, {s(S_T+1)}, {2560-12*16}')
    p.e(f's_lshl_b32 {s(S_T+1)}, {s(S_T)}, 6')
    p.e(f's_add_u32 {s(B1)}, {s(S_T+1)}, {768-10*16}')
    p.e(f's_add_u32 {s(B3)}, {s(S_T+1)}, {768+32-22*16}')
    p.label('K1_NOTKV')
    p.e(f's_lshl_b32 {s(S_WINC2)}, {s(STR)}, 5')
    p.e(f'v_mul_lo_u32 {v(t+4)}, {v(t+8)}, {s(STR)}')
    p.e(f'v_add_u32 {v(t+4)}, {ADJ-2048}, {v(t+4)}')
    for par in range(2):
        c = t + 6 + par
        o = V_DW2 + par
        p.e(f'v_mov_b32 {v(o)}, {s(B3)}')
        for lim, B in ((22, B2), (12, B1), (10, B0)):
            p.e(f'v_mov_b32 {v(t)}, {s(B)}')
            p.e(f'v_cmp_gt_u32 vcc, {lim}, {v(c)}')
            p.e(f'v_cndmask_b32 {v(o)}, {v(o)}, {v(t)}, vcc')
        p.e(f'v_lshl_add_u32 {v(o)}, {v(c)}, 4, {v(o)}')
        p.e(f'v_add_u32 {v(o)}, {v(o)}, {v(t+4)}')
        p.e(f'v_mov_b32 {v(t)}, {OOB}')
        p.e(f'v_cmp_gt_u32 vcc, {s(LIM)}, {v(c)}')
        p.e(f'v_cndmask_b32 {v(o)}, {v(t)}, {v(o)}, vcc')
    p.e(f's_lshl_b32 {s(S_T)}, {s(STR)}, 1')
    p.e(f's_sub_u32 {s(S_T)}, {s(S_T)}, 1024')
    p.e(f'v_add_u32 {v(V_DW2+1)}, {s(S_T)}, {v(V_DW2+1)}')
    p.e(f'v_lshlrev_b32 {v(V_L16)}, 4, {v(V_LANE)}')
    p.ext(dma_lines())
    in_prefetch_setup(p)
    st_.stamp(1)
    p.e(f's_waitcnt vmcnt(20)')
    p.e('s_barrier')
    st_.stamp(2)
    first_reads(p, 4)
    p.e(f's_mov_b32 {s(S_CNT)}, 0')
    p.e(f's_cmp_eq_u32 {s(S_ISV)}, 0')
    p.e('s_cbranch_scc0 K1_LOOPV')
    for orient, lab in ((0, 'K1_LOOPK'), (1, 'K1_LOOPV')):
        p.label(lab)
        stage(p, 0, 8, 4, orient, V_ACC, lambda: in_prefetch(p))
        p.e(f's_cmp_lg_u32 {s(S_CNT)}, 5')
        p.e(f's_cbranch_scc1 {lab}_NS')
        for i in range(3):
            p.e(f's_mov_b32 {s(S_SW+i)}, {s(S_SW2+i)}')
        for i in range(2):
            p.e(f's_mov_b32 {s(S_SX+i)}, {s(S_SX2+i)}')
        p.e(f's_mov_b32 {s(S_SX+2)}, {2048*1280}')
        p.e(f's_mov_b32 {s(S_XOFF)}, 0')
        p.e(f's_mov_b32 {s(S_WOFF)}, 0')
        p.e(f's_mov_b32 {s(S_WINC)}, {s(S_WINC2)}')
        for i in range(4):
            p.e(f'v_mov_b32 {v(V_DX+i)}, {v(V_DX2+i)}')
        p.label(f'{lab}_NS')
        stage(p, 1, 8, 4, orient, V_ACC, lambda: in_prefetch(p))
        p.e(f's_add_u32 {s(S_CNT)}, {s(S_CNT)}, 1')
        if stamps:
            p.e(f's_and_b32 s92, {s(S_CNT)}, 1')
            p.e(f's_cbranch_scc1 {lab}_NOST')
            p.e(f's_lshr_b32 s92, {s(S_CNT)}, 1')
            p.e(f's_add_u32 s92, s92, 2')
            st_.stamp_dyn(92)
            p.label(f'{lab}_NOST')
        p.e(f's_cmp_lt_u32 {s(S_CNT)}, 8')
        p.e(f's_cbranch_scc1 {lab}')
        if orient == 0:
            p.e('s_branch K1_EPI1')
    p.label('K1_EPI1')
    p.e(f's_and_b32 {s(S_T)}, {s(S_W)}, 3')
    p.e(f's_lshl_b32 {s(S_ROWB)}, {s(S_T)}, 6')
    p.e(f's_lshr_b32 {s(S_T)}, {s(S_W)}, 2')
    p.e(f's_mul_i32 {s(S_NTB)}, {s(S_T)}, 6')
    read_addrs(p, 6)
    first_reads(p, 6)
    if a2:
        srd(p, S_PHI, 'A_w_phi', 32 * 800)
        p.e(f's_sub_u32 {s(S_T)}, {s(S_C2)}, 24')
        p.e(f's_mul_i32 {s(S_T)}, {s(S_T)}, 3200')
        p.e(f's_cselect_b32 {s(S_PHI+2)}, 0, {s(S_PHI+2)}')
        p.e(f's_cselect_b32 {s(S_T)}, 0, {s(S_T)}')
        p.e(f's_mul_i32 {s(S_T+1)}, {s(S_W)}, 60')
        p.e(f'v_add_u32 {v(V_DW2)}, {s(S_T+1)}, {v(V_LANE)}')
        p.e(f'v_lshlrev_b32 {v(V_DW2+1)}, 3, {v(V_DW2)}')
        p.e(f'v_mov_b32 {v(V_ST)}, {OOB}')
        p.e(f'v_cmp_gt_u32 vcc, 400, {v(V_DW2)}')
        p.e(f'v_cndmask_b32 {v(V_DW2+1)}, {v(V_ST)}, {v(V_DW2+1)}, vcc')
        p.e(f'buffer_load_dwordx2 {v(V_DX2,2)}, {v(V_DW2+1)}, {s(S_PHI,4)}, {s(S_T)} offen')
    for i in range(64):
        p.e(f'v_cvt_pk_bf16_f32 {v(V_PK+i)}, {v(V_ACC+2*i)}, {v(V_ACC+2*i+1)}')
    for i in range(96):
        p.e(f'v_mov_b32 {v(V_ACC2+i)}, 0')
    p.e(f's_mov_b32 {s(S_CNT)}, 0')
    p.e(f's_mov_b32 {s(S_IDX)}, 0')
    st_.stamp(7)
    p.label('K1_LOOP2')

    def dstore(k):
        def f():
            if NOST:
                return
            p.e(f's_cmp_ge_u32 {s(S_CNT)}, 8')
            p.e(f's_cbranch_scc1 K1_NODS{k}')
            p.e(f's_set_gpr_idx_on {s(S_IDX)}, 0x1')
            for j in range(4):
                p.e(f'v_mov_b32 {v(V_ST+4*k+j)}, {v(V_PK+4*k+j)}')
            p.e('s_set_gpr_idx_off')
            p.e(f'buffer_store_dwordx4 {v(V_ST+4*k,4)}, {v(V_L16)}, {s(S_WS,4)}, {s(S_OUT)} offen offset:{1024*k}{SM}')
            if k == 1:
                p.e(f's_add_u32 {s(S_IDX)}, {s(S_IDX)}, 8')
                p.e(f's_add_u32 {s(S_OUT)}, {s(S_OUT)}, {s(S_OINC)}')
                p.e(f's_xor_b32 {s(S_OINC)}, {s(S_OINC)}, {s(S_OX)}')
            p.e(f's_branch K1_DS{k}')
            p.label(f'K1_NODS{k}')
            in_prefetch(p)
            p.label(f'K1_DS{k}')
        return f
    stage(p, 0, 4, 6, 0, V_ACC2, dstore(0))
    p.e(f's_cmp_lg_u32 {s(S_CNT)}, 7')
    p.e('s_cbranch_scc1 K1_LOOP2_NS')
    p.e(f's_mov_b32 {s(S_SX+2)}, 0')
    p.e(f's_mov_b32 {s(S_SW+2)}, 0')
    p.label('K1_LOOP2_NS')
    stage(p, 1, 4, 6, 0, V_ACC2, dstore(1))
    p.e(f's_add_u32 {s(S_CNT)}, {s(S_CNT)}, 1')
    if stamps:
        p.e(f's_and_b32 s92, {s(S_CNT)}, 1')
        p.e(f's_cbranch_scc1 K1_L2_NOST')
        p.e(f's_lshr_b32 s92, {s(S_CNT)}, 1')
        p.e(f's_add_u32 s92, s92, 7')
        st_.stamp_dyn(92)
        p.label(f'K1_L2_NOST')
    p.e(f's_cmp_lt_u32 {s(S_CNT)}, 10')
    p.e('s_cbranch_scc1 K1_LOOP2')
    p.e('s_waitcnt vmcnt(0)')
    p.e(f's_cmp_ge_u32 {s(S_C2)}, 22')
    p.e('s_cbranch_scc1 K1_EPIA')
    p.e(f's_mul_i32 {s(S_T)}, {s(S_C2)}, 6')
    p.e(f's_lshr_b32 {s(S_T+1)}, {s(S_NTB)}, 1')
    p.e(f's_add_u32 {s(S_T)}, {s(S_T)}, {s(S_T+1)}')
    p.e(f's_lshl_b32 {s(S_T+1)}, {s(S_RB)}, 16')
    p.e(f's_lshl_b32 {s(S_T+2)}, {s(S_ROWB)}, 8')
    p.e(f's_add_u32 {s(S_T+1)}, {s(S_T+1)}, {s(S_T+2)}')
    p.e(f's_mov_b32 {s(S_T+5)}, {f32hex(QSCALE)}')
    k = 0
    for a3 in range(3):
        p.e(f's_cmp_ge_u32 {s(S_T)}, 128')
        p.e('s_cbranch_scc1 K1_FIN')
        p.e(f's_lshr_b32 {s(S_T+2)}, {s(S_T)}, 2')
        p.e(f's_lshl_b32 {s(S_T+2)}, {s(S_T+2)}, 19')
        p.e(f's_and_b32 {s(S_T+3)}, {s(S_T)}, 3')
        p.e(f's_lshl_b32 {s(S_T+3)}, {s(S_T+3)}, 10')
        p.e(f's_add_u32 {s(S_T+2)}, {s(S_T+2)}, {s(S_T+3)}')
        p.e(f's_add_u32 {s(S_T+2)}, {s(S_T+2)}, {s(S_T+1)}')
        for st in range(4):
            a = V_ACC2 + 4 * (st * 6 + 2 * a3)
            d = V_XF + 4 * (k % 12)
            k += 1
            for j in range(8):
                p.e(f'v_mul_f32 {v(a+j)}, {s(S_T+5)}, {v(a+j)}')
            for j in range(4):
                p.e(f'v_cvt_pk_bf16_f32 {v(d+j)}, {v(a+2*j)}, {v(a+2*j+1)}')
            if NOST < 2:
                p.e(f'buffer_store_dwordx4 {v(d,4)}, {v(V_L16)}, {s(S_WS,4)}, {s(S_T+2)} offen{SM}')
            if st < 3:
                p.e(f's_add_u32 {s(S_T+2)}, {s(S_T+2)}, 4096')
        p.e(f's_add_u32 {s(S_T)}, {s(S_T)}, 1')
    p.e('s_branch K1_FIN')
    p.label('K1_EPIA')
    p.e(f'v_lshrrev_b32 {v(3)}, 4, {v(V_LANE)}')
    p.e(f'v_lshlrev_b32 {v(3)}, 14, {v(3)}')
    p.e(f'v_and_b32 {v(4)}, 15, {v(V_LANE)}')
    p.e(f'v_lshl_add_u32 {v(3)}, {v(4)}, 3, {v(3)}')
    p.e(f's_lshl_b32 {s(S_T+1)}, {s(S_RB)}, 11')
    p.e(f's_lshl_b32 {s(S_T+2)}, {s(S_ROWB)}, 3')
    p.e(f's_add_u32 {s(S_T+1)}, {s(S_T+1)}, {s(S_T+2)}')
    p.e(f's_add_u32 {s(S_T+1)}, {s(S_T+1)}, {WS_QA}')
    p.e(f's_cmp_ge_u32 {s(S_C2)}, 24')
    p.e('s_cbranch_scc1 K1_EPIKV')
    p.e(f's_sub_u32 {s(S_T)}, {s(S_C2)}, 22')
    p.e(f's_mul_i32 {s(S_T)}, {s(S_T)}, 48')
    p.e(f's_lshl_b32 {s(S_T+2)}, {s(S_NTB)}, 2')
    p.e(f's_add_u32 {s(S_T)}, {s(S_T)}, {s(S_T+2)}')
    p.e(f's_lshl_b32 {s(S_T)}, {s(S_T)}, 14')
    p.e(f's_add_u32 {s(S_T)}, {s(S_T)}, {s(S_T+1)}')
    k = 0

    def qstore(nt):
        nonlocal k
        for st in range(4):
            a = V_ACC2 + 4 * (st * 6 + nt)
            d = V_XF + 2 * (k % 24)
            k += 1
            for j in range(2):
                p.e(f'v_cvt_pk_bf16_f32 {v(d+j)}, {v(a+2*j)}, {v(a+2*j+1)}')
            p.e(f'buffer_store_dwordx2 {v(d,2)}, {v(3)}, {s(S_WS,4)}, {s(S_T)} offen offset:{st*128}')
    for nt in range(6):
        qstore(nt)
        p.e(f's_add_u32 {s(S_T)}, {s(S_T)}, 65536')
    p.e('s_branch K1_FIN')
    p.label('K1_EPIKV')
    p.e(f's_sub_u32 {s(S_T)}, {s(S_C2)}, 24')
    p.e(f's_lshl_b32 {s(S_T)}, {s(S_T)}, 3')
    p.e(f's_and_b32 {s(S_T+2)}, {s(S_W)}, 4')
    p.e(f's_add_u32 {s(S_T)}, {s(S_T)}, {s(S_T+2)}')
    p.e(f's_add_u32 {s(S_T)}, {s(S_T)}, 96')
    p.e(f's_lshl_b32 {s(S_T)}, {s(S_T)}, 14')
    p.e(f's_add_u32 {s(S_T)}, {s(S_T)}, {s(S_T+1)}')
    qstore(5)
    if a2:
        import k1a2
        k1a2.emit(p, globals())
    p.label('K1_FIN')
    st_.stamp(13)
    st_.flush(S_WS, S_W, WS_STAMP, 14, 6)
    p.label('K1_END')
    p.e('s_endpgm')
    p.finalize()
    return p
```

```python
from asmlib import *
from layout import *
import struct, os
SM = os.environ.get('SM', '')
SM = (' ' + SM.replace('_', ' ')) if SM else ''
NOST = int(os.environ.get('NOST', '0'))
VMA = int(os.environ.get('VMA', '0'))
PF = int(os.environ.get('PF', '3'))
PFS = int(os.environ.get('PFS', '7'))


def f32hex(x):
    return '0x%08x' % struct.unpack('<I', struct.pack('<f', x))[0]


V_LANE = 1
V_L16 = 2
V_XR = (8, 15)
V_WRD = 9
V_DX = 16
V_DW = 18
V_DX2 = 20
V_DW2 = 22
V_XF = 24
V_WF = 40
V_ST = 88
V_T = 96
V_PK = 96
V_ACC = 128
V_ACC2 = 160

S_W = 3
S_RB = 4
S_CT = 5
S_ISV = 6
S_OUT = 7
S_PTR = 8
S_TX = 28
S_TW = 24
S_TP = 8
S_SX = 36
S_SW = 40
S_WS = 44
S_SX2 = 48
S_SW2 = 52
S_XOFF = 56
S_WOFF = 57
S_WINC = 58
S_WINC2 = 59
S_MX = 60
S_DELTA = 61
S_CNT = 62
S_RSLOT = 63
S_T = 64
S_C2 = 80
S_ROWB = 81
S_NTB = 82
S_IDX = 83
S_MXB = 88
S_OINC = 34
S_OX = 35
S_XI = (84, 51)
S_OFF2 = 85
S_MW = 86
S_STEP = 87

L_X = 65536
XU = 32768
LEND = 163840
OOB = 0x7FF00000


def ptr(name):
    return S_PTR + KA[name] // 4


def srd(p, dst, name, size):
    p.e(f's_mov_b32 {s(dst)}, {s(ptr(name))}')
    p.e(f's_mov_b32 {s(dst+1)}, {s(ptr(name)+1)}')
    p.e(f's_mov_b32 {s(dst+2)}, {size}')
    p.e(f's_mov_b32 {s(dst+3)}, 0x00020000')


def wdma():
    return [[f's_mov_b32 m0, {s(S_MW)}',
             f's_add_u32 {s(S_MW)}, {s(S_MW)}, 16384',
             f'buffer_load_dwordx4 {v(V_DW)}, {s(S_SW,4)}, {s(S_WOFF)} offen lds'],
            [f'buffer_load_dwordx4 {v(V_DW+1)}, {s(S_SW,4)}, {s(S_WOFF)} offen offset:1024 lds',
             f's_and_b32 {s(S_MW)}, {s(S_MW)}, 0xffff',
             f's_add_u32 {s(S_WOFF)}, {s(S_WOFF)}, {s(S_WINC)}']]


def xdma(half):
    L = [[f's_mov_b32 m0, {s(S_MX)}',
          f's_add_u32 {s(S_MX)}, {s(S_MX)}, {XU-2048 if half else 2048}',
          f'buffer_load_dwordx4 {v(V_DX)}, {s(S_SX,4)}, {s(S_XOFF)} offen lds'],
         [f'buffer_load_dwordx4 {v(V_DX+1)}, {s(S_SX,4)}, {s(S_XOFF)} offen offset:1024 lds',
          f's_add_u32 {s(S_XOFF)}, {s(S_XOFF)}, {s(S_XI[half])}']]
    if half:
        L[1] += [f's_cmp_ge_u32 {s(S_MX)}, {LEND}', f's_cselect_b32 {s(S_MX)}, {s(S_MXB)}, {s(S_MX)}']
    return L


K1X = int(os.environ.get('K1X', '0'))


def xread(st, h):
    if K1X & 2:
        return ''
    return f'ds_read_b128 {v(V_XF+4*(st%4),4)}, {v(V_XR[h])} offset:{st*2048}'


def wreads(fs, NT):
    if K1X & 1:
        return [''] * (2 * NT)
    return [f'ds_read_b64_tr_b16 {v(V_WF+fs*24+4*nt+2*j,2)}, {v(V_WRD+nt)} offset:{fs*16384+j*2048}'
            for nt in range(NT) for j in range(2)]


def mfma(fs, NT, orient, accb, st, nt):
    ai = st * NT + nt if orient == 0 else ((st >> 1) * NT + nt) * 2 + (st & 1)
    acc = v(accb + 4 * ai, 4)
    x = v(V_XF + 4 * (st % 4), 4)
    w = v(V_WF + fs * 24 + 4 * nt, 4)
    a, bb = (w, x) if orient == 0 else (x, w)
    if K1X & 8:
        return ''
    return f'v_mfma_f32_16x16x32_bf16 {acc}, {a}, {bb}, {acc}'


def stage(p, fs, NS, NT, orient, accb, extra=None, dma=True):
    mf = lambda st, nt: mfma(fs, NT, orient, accb, st, nt)
    pre = [mf(st, nt) for st in range(NS - 2) for nt in range(NT)]
    slots = [[] for _ in pre]
    slots[0] += [xread(2, fs)]
    slots[1] += [xread(3, fs)]
    for st in range(4, NS):
        slots[(st - 3) * NT].append(xread(st, fs))
    if fs:
        slots[0] += [f's_add_u32 {s(S_RSLOT)}, {s(S_RSLOT)}, {XU}',
                     f's_cmp_ge_u32 {s(S_RSLOT)}, {LEND}',
                     f's_cselect_b32 {s(S_RSLOT)}, {L_X}, {s(S_RSLOT)}',
                     f's_cselect_b32 {s(S_DELTA)}, {-2*XU}, {s(S_T+15)}']
        for i in range(NT):
            slots[3 + i].append(f'v_xor_b32 {v(V_WRD+i)}, {s(S_T+15)}, {v(V_WRD+i)}')
    slots[2].append(f'v_add_u32 {v(V_XR[fs^1])}, {s(S_DELTA)}, {v(V_XR[fs^1])}')
    for m, a in zip(pre, slots):
        p.e(m)
        p.ext(a)
    p.e(f's_waitcnt vmcnt({(11 if fs else 13) + VMA}) lgkmcnt(0)')
    p.e('s_barrier')
    post = [mf(st, nt) for st in range(NS - 2, NS) for nt in range(NT)]
    n = len(post)
    wr = wreads(fs ^ 1, NT)
    rd = [xread(0, fs ^ 1)] + wr[:4] + [xread(1, fs ^ 1)] + wr[4:]
    slots = interleave(post, rd, 0, n - 2)
    d = interleave(post, (wdma() + xdma(fs ^ 1)) if dma else [''], 0, n - 2)
    if K1X & 4:
        d = [[[y for y in x if 'buffer' not in y] for x in sl] for sl in d]
    for i, (m, a, b) in enumerate(zip(post, slots, d)):
        p.e(m)
        p.ext(a)
        p.ext(b)
        if extra and i == n - 2:
            extra()


def last_stage(p, prefill, postfill):
    mf = lambda st, nt: mfma(1, 6, 0, V_ACC2, st, nt)
    pre = [mf(st, nt) for st in range(2) for nt in range(6)]
    sl = interleave(pre, prefill, 2, 12)
    sl[0].append(xread(2, 1))
    sl[1].append(xread(3, 1))
    for m, a in zip(pre, sl):
        p.e(m)
        p.ext(a)
    p.e('s_waitcnt vmcnt(0) lgkmcnt(0)')
    p.e('s_barrier')
    post = [mf(st, nt) for st in range(2, 4) for nt in range(6)]
    sl = interleave(post, postfill, 0, 12)
    for m, a in zip(post, sl):
        p.e(m)
        p.ext(a)


def first_reads(p, NT):
    wr = wreads(0, NT)
    p.ext([xread(0, 0)] + wr + [xread(1, 0)])


def read_addrs(p, NT):
    t = V_ST
    p.e(f's_lshl_b32 {s(S_T)}, {s(S_ROWB)}, 7')
    p.e(f's_add_u32 {s(S_T)}, {s(S_T)}, {s(S_RSLOT)}')
    p.e(f'v_and_b32 {v(t)}, 15, {v(V_LANE)}')
    p.e(f'v_lshl_add_u32 {v(t+1)}, {v(t)}, 7, {s(S_T)}')
    p.e(f'v_lshrrev_b32 {v(t+3)}, 4, {v(V_LANE)}')
    p.e(f'v_bfe_u32 {v(t+2)}, {v(V_LANE)}, 1, 3')
    p.e(f'v_xor_b32 {v(t+2)}, {v(t+2)}, {v(t+3)}')
    p.e(f'v_lshl_add_u32 {v(V_XR[0])}, {v(t+2)}, 4, {v(t+1)}')
    p.e(f'v_xor_b32 {v(V_XR[1])}, 64, {v(V_XR[0])}')
    p.e(f's_mov_b32 {s(S_DELTA)}, 0')
    p.e(f'v_bfe_u32 {v(t)}, {v(V_LANE)}, 2, 2')
    p.e(f'v_lshlrev_b32 {v(t+1)}, 12, {v(t+3)}')
    p.e(f'v_lshl_add_u32 {v(t+1)}, {v(t)}, 9, {v(t+1)}')
    p.e(f'v_and_b32 {v(t+2)}, 3, {v(V_LANE)}')
    p.e(f'v_lshl_add_u32 {v(t+1)}, {v(t+2)}, 3, {v(t+1)}')
    p.e(f'v_bfe_u32 {v(t+2)}, {v(V_LANE)}, 2, 3')
    for nt in range(NT):
        p.e(f's_add_u32 {s(S_T)}, {s(S_NTB)}, {nt}')
        p.e(f'v_xor_b32 {v(t+4)}, {s(S_T)}, {v(t+2)}')
        p.e(f'v_lshl_add_u32 {v(V_WRD+nt)}, {v(t+4)}, 5, {v(t+1)}')


def dma_x_offs(p, dst, stride):
    t = V_T
    p.e(f's_lshl3_add_u32 {s(S_T)}, {s(S_RB)}, {s(S_W)}')
    p.e(f's_lshl_b32 {s(S_T)}, {s(S_T)}, 5')
    p.e(f'v_lshrrev_b32 {v(t)}, 3, {v(V_LANE)}')
    p.e(f'v_add_u32 {v(t)}, {s(S_T)}, {v(t)}')
    p.e(f'v_mul_u32_u24 {v(t)}, {stride}, {v(t)}')
    p.e(f'v_and_b32 {v(t+1)}, 7, {v(V_LANE)}')
    p.e(f'v_lshrrev_b32 {v(t+2)}, 4, {v(V_LANE)}')
    p.e(f'v_xor_b32 {v(t+1)}, {v(t+1)}, {v(t+2)}')
    p.e(f'v_lshl_add_u32 {v(dst)}, {v(t+1)}, 4, {v(t)}')
    p.e(f'v_xor_b32 {v(dst+1)}, 64, {v(dst)}')
    p.e(f'v_add_u32 {v(dst+1)}, {8*stride-1024}, {v(dst+1)}')


S_PF = 96
S_PFO = 100
S_PFI = 101
S_PFSZ = 89


PFL = int(os.environ.get('PFL', '6'))
PFT = os.environ.get('PFT', '64,64,86,42,0,0')


def in_prefetch_setup(p):
    cnt = [int(x) for x in PFT.split(',')]
    tab = [('B_x', 2048*1280), ('A_x', 2048*1280), ('B_w_q', 640*8192), ('A_wqkv', 640*3840), ('B_w_o', 4096*1280),
           ('A_wo', 640*1280)]
    tab = [(n, sz, k, k * 8 * PFL * 128) for (n, sz), k in zip(tab, cnt) if k]
    R = S_PF
    p.e(f's_mov_b32 {s(R+3)}, 0x00020000')
    p.e(f's_mov_b32 {s(R+2)}, 0')
    p.e(f's_mov_b32 {s(S_PFO)}, 0')
    starts = [sum(t[2] for t in tab[:i]) for i in range(len(tab) + 1)]
    assert starts[-1] == 256
    for i in range(len(tab) - 1, -1, -1):
        n, sz, k, inc = tab[i]
        op = 's_mov_b32' if i == len(tab) - 1 else 's_cselect_b32'
        def e(d, val):
            p.e(f'{op} {s(d)}, {val}' + ('' if i == len(tab) - 1 else f', {s(d)}'))
        if i != len(tab) - 1:
            p.e(f's_cmp_lt_u32 s2, {starts[i+1]}')
        e(R, s(ptr(n)))
        e(R + 1, s(ptr(n) + 1))
        e(S_PFSZ, sz)
        e(S_PFI, inc)
        e(S_T, starts[i])
    p.e(f'v_mov_b32 {v(5)}, {OOB}')
    nd = 4
    if PF & 8:
        p.e(f's_lshl3_add_u32 {s(S_T+1)}, s2, {s(S_W)}')
        p.e(f's_lshl_b32 {s(S_T+1)}, {s(S_T+1)}, 10')
        p.e(f'v_lshlrev_b32 {v(6)}, 7, {v(V_LANE)}')
        p.e(f'v_cmp_gt_u32 vcc, 8, {v(V_LANE)}')
        p.e(f'v_cndmask_b32 {v(6)}, {v(5)}, {v(6)}, vcc')
        p.e(f'buffer_load_dword {v(4)}, {v(6)}, {s(S_SX,4)}, {s(S_T+1)} offen')
        nd = 3
    p.e(f's_sub_u32 {s(S_T)}, s2, {s(S_T)}')
    p.e(f's_lshl3_add_u32 {s(S_T)}, {s(S_T)}, {s(S_W)}')
    p.e(f's_mul_i32 {s(S_T)}, {s(S_T)}, {PFL}')
    p.e(f'v_add_lshl_u32 {v(6)}, {s(S_T)}, {v(V_LANE)}, 7')
    p.e(f'v_cmp_gt_u32 vcc, {PFL}, {v(V_LANE)}')
    p.e(f'v_cndmask_b32 {v(6)}, {v(5)}, {v(6)}, vcc')
    for i in range(nd):
        p.e(f'buffer_load_dword {v(4)}, {v(6)}, {s(R,4)}, {s(S_PFO)} offen')
    if PF & 2:
        p.e(f's_mov_b32 {s(R+2)}, {s(S_PFSZ)}')


def in_prefetch(p):
    p.e(f'buffer_load_dword {v(4)}, {v(6)}, {s(S_PF,4)}, {s(S_PFO)} offen')
    p.e(f's_add_u32 {s(S_PFO)}, {s(S_PFO)}, {s(S_PFI)}')


def tail_setup(p):
    p.e(f's_lshl3_add_u32 {s(S_T)}, {s(S_C2)}, {s(S_RB)}')
    p.e(f's_sub_u32 {s(S_STEP)}, 175, {s(S_T)}')
    p.e(f's_cmp_lt_u32 {s(S_STEP)}, 128')
    p.e(f's_cselect_b32 {s(S_TX)}, {s(ptr("B_w_o"))}, {s(ptr("A_wo"))}')
    p.e(f's_cselect_b32 {s(S_TX+1)}, {s(ptr("B_w_o")+1)}, {s(ptr("A_wo")+1)}')
    p.e(f's_mov_b32 {s(S_TX+2)}, {640*1280+1024}')
    p.e(f's_cselect_b32 {s(S_TX+2)}, {4096*1280+1024}, {s(S_TX+2)}')
    p.e(f's_sub_u32 {s(S_TX)}, {s(S_TX)}, 1024')
    p.e(f's_subb_u32 {s(S_TX+1)}, {s(S_TX+1)}, 0')
    p.e(f's_and_b32 {s(S_T)}, {s(S_STEP)}, 127')
    p.e(f's_lshl3_add_u32 {s(S_T)}, {s(S_T)}, {s(S_W)}')
    p.e(f's_mul_i32 {s(S_OFF2)}, {s(S_T)}, 5120')
    p.e(f's_cmp_lt_u32 {s(S_STEP)}, {NSTEP}')
    p.e(f's_cselect_b32 {s(S_TX+2)}, {s(S_TX+2)}, 0')
    p.e(f's_max_u32 {s(S_T)}, {s(S_C2)}, 24')
    p.e(f's_sub_u32 {s(S_T)}, {s(S_T)}, 24')
    p.e(f's_lshr_b32 {s(S_T+1)}, {s(S_W)}, 2')
    p.e(f's_lshl1_add_u32 {s(S_T)}, {s(S_T)}, {s(S_T+1)}')
    p.e(f's_mul_i32 {s(S_T)}, {s(S_T)}, 1600')
    p.e(f's_add_u32 {s(S_TW)}, {s(ptr("A_w_phi"))}, {s(S_T)}')
    p.e(f's_addc_u32 {s(S_TW+1)}, {s(ptr("A_w_phi")+1)}, 0')
    p.e(f's_sub_u32 {s(S_TP)}, {s(S_TW)}, 1024')
    p.e(f's_subb_u32 {s(S_TP+1)}, {s(S_TW+1)}, 0')
    p.e(f's_cmp_ge_u32 {s(S_C2)}, 24')
    p.e(f's_cselect_b32 {s(S_TW+2)}, 1600, 0')
    p.e(f's_cselect_b32 {s(S_TP)}, {s(S_TP)}, {s(S_TX)}')
    p.e(f's_cselect_b32 {s(S_TP+1)}, {s(S_TP+1)}, {s(S_TX+1)}')
    p.e(f's_cselect_b32 {s(S_TP+2)}, {1600+1024}, {s(S_TX+2)}')
    p.e(f's_cselect_b32 {s(S_TP+3)}, 0, {s(S_OFF2)}')
    p.e(f'v_lshlrev_b32 {v(3)}, 7, {v(V_LANE)}')
    p.e(f'v_add_u32 {v(3)}, 1024, {v(3)}')
    p.e(f'v_cmp_gt_u32 vcc, 8, {v(V_LANE)}')
    p.e(f'v_cndmask_b32 {v(3)}, {v(5)}, {v(3)}, vcc')


def build(name='k1_kernel', a2=True, stamps=False):
    p = Prog()
    st_ = Stamps(p, 7, 90, stamps)
    p.e('s_cmp_ge_u32 s2, 256')
    p.e('s_cbranch_scc1 K1_END')
    st_.start()
    p.e(f's_load_dwordx16 {s(S_PTR,16)}, s[0:1], 0')
    p.e(f's_load_dwordx8 {s(S_PTR+16,8)}, s[0:1], 64')
    p.e(f's_load_dwordx2 {s(S_PTR+24,2)}, s[0:1], 96')
    if PF & 1:
        code_prefetch(p, 4, 6, S_PF, 'k1_kernel', 'K3_END', 'K1')
    p.e(f'v_lshrrev_b32 {v(2)}, 6, v0')
    p.e(f'v_and_b32 {v(V_LANE)}, 63, v0')
    p.e(f'v_readfirstlane_b32 {s(S_W)}, {v(2)}')
    p.e(f's_and_b32 {s(S_T)}, s2, 7')
    p.e(f's_bfe_u32 {s(S_RB)}, s2, 0x30003')
    p.e(f's_bfe_u32 {s(S_T+3)}, s2, 0x10006')
    p.e(f's_lshl_b32 {s(S_CT)}, {s(S_T)}, 1')
    p.e(f's_add_u32 {s(S_CT)}, {s(S_CT)}, {s(S_T+3)}')
    p.e(f's_lshr_b32 {s(S_ISV)}, s2, 7')
    dma_x_offs(p, V_DX, 1024)
    t = V_T
    p.e(f'v_lshrrev_b32 {v(t)}, 5, {v(V_LANE)}')
    p.e(f's_lshl_b32 {s(S_T)}, {s(S_W)}, 2')
    p.e(f'v_add_u32 {v(t+8)}, {s(S_T)}, {v(t)}')
    p.e(f'v_and_b32 {v(t+2)}, 31, {v(V_LANE)}')
    p.e(f'v_lshlrev_b32 {v(t+3)}, 1, {v(t)}')
    p.e(f's_and_b32 {s(S_T)}, {s(S_T)}, 8')
    p.e(f'v_xor_b32 {v(t+6)}, {v(t+2)}, {v(t+3)}')
    p.e(f'v_xor_b32 {v(t+6)}, {s(S_T)}, {v(t+6)}')
    p.e(f'v_xor_b32 {v(t+7)}, 4, {v(t+6)}')
    p.e(f's_lshl_b32 {s(S_T)}, {s(S_CT)}, 9')
    p.e(f'v_lshl_add_u32 {v(t+4)}, {v(t+8)}, 13, {s(S_T)}')
    p.e(f'v_lshl_add_u32 {v(V_DW)}, {v(t+6)}, 4, {v(t+4)}')
    p.e(f'v_lshl_add_u32 {v(V_DW+1)}, {v(t+7)}, 4, {v(t+4)}')
    p.e(f'v_add_u32 {v(V_DW+1)}, {16384-1024}, {v(V_DW+1)}')
    p.e(f's_lshl_b32 {s(S_MW)}, {s(S_W)}, 11')
    p.e(f's_lshl1_add_u32 {s(S_MXB)}, {s(S_MW)}, {L_X}')
    p.e(f's_mov_b32 {s(S_MX)}, {s(S_MXB)}')
    p.e(f's_mov_b32 {s(S_XI[0])}, {16*1024}')
    p.e(f's_mov_b32 {s(S_XI[1])}, {128-16*1024}')
    p.e(f's_mov_b32 {s(S_XOFF)}, 0')
    p.e(f's_mov_b32 {s(S_WOFF)}, 0')
    p.e(f's_mov_b32 {s(S_WINC)}, {32*8192}')
    p.e(f's_mov_b32 {s(S_SW+2)}, {512*8192}')
    p.e(f's_mov_b32 {s(S_SW+3)}, 0x00020000')
    p.e(f's_cmp_eq_u32 {s(S_ISV)}, 0')
    p.e('s_waitcnt lgkmcnt(0)')
    srd(p, S_SX, 'B_c_kv', 2048 * 1024)
    p.e(f's_cselect_b32 {s(S_SW)}, {s(ptr("B_w_uk"))}, {s(ptr("B_w_uv"))}')
    p.e(f's_cselect_b32 {s(S_SW+1)}, {s(ptr("B_w_uk")+1)}, {s(ptr("B_w_uv")+1)}')
    p.ext(xdma(0) + xdma(1) + wdma())
    p.ext(wdma() + xdma(0))
    p.e(f's_mov_b32 {s(S_RSLOT)}, {L_X}')
    p.e(f's_mov_b32 {s(S_T+15)}, {XU}')
    p.e(f's_and_b32 {s(S_T)}, {s(S_W)}, 1')
    p.e(f's_lshl_b32 {s(S_ROWB)}, {s(S_T)}, 7')
    p.e(f's_and_b32 {s(S_NTB)}, {s(S_W)}, 6')
    p.e(f's_lshl_b32 {s(S_NTB)}, {s(S_NTB)}, 1')
    read_addrs(p, 4)
    for i in range(64):
        p.e(f'v_mov_b32 {v(V_ACC+i)}, 0')
    p.ext(wdma() + xdma(1))
    for i in range(64, 128):
        p.e(f'v_mov_b32 {v(V_ACC+i)}, 0')
    p.ext(wdma() + xdma(0))
    srd(p, S_WS, 'ws', WS_SIZE)
    p.e(f's_lshr_b32 {s(S_T)}, {s(S_W)}, 2')
    p.e(f's_lshl_b32 {s(S_T+1)}, {s(S_CT)}, 1')
    p.e(f's_add_u32 {s(S_T)}, {s(S_T)}, {s(S_T+1)}')
    p.e(f's_lshl_b32 {s(S_OUT)}, {s(S_T)}, 19')
    p.e(f's_lshl_b32 {s(S_T)}, {s(S_RB)}, 16')
    p.e(f's_add_u32 {s(S_OUT)}, {s(S_OUT)}, {s(S_T)}')
    p.e(f's_lshl_b32 {s(S_T+1)}, {s(S_ROWB)}, 8')
    p.e(f's_add_u32 {s(S_OUT)}, {s(S_OUT)}, {s(S_T+1)}')
    p.e(f's_bfe_u32 {s(S_T)}, {s(S_W)}, 0x10001')
    p.e(f's_add_u32 {s(S_T+1)}, {s(S_ISV)}, 11')
    p.e(f's_lshl_b32 {s(S_T)}, {s(S_T)}, {s(S_T+1)}')
    p.e(f's_add_u32 {s(S_OUT)}, {s(S_OUT)}, {s(S_T)}')
    p.e(f's_lshr_b32 {s(S_OINC)}, 4096, {s(S_ISV)}')
    p.e(f's_lshl_b32 {s(S_OX)}, {s(S_ISV)}, 12')
    p.e(f's_lshl_b32 {s(S_T)}, {s(S_ISV)}, 24')
    p.e(f's_add_u32 {s(S_OUT)}, {s(S_OUT)}, {s(S_T)}')
    p.e(f's_add_u32 {s(S_OUT)}, {s(S_OUT)}, {WS_K}')
    in_prefetch_setup(p)
    p.e(f's_and_b32 {s(S_T)}, s2, 1')
    p.e(f's_lshl_b32 {s(S_T)}, {s(S_T)}, 2')
    p.e(f's_bfe_u32 {s(S_T+1)}, s2, 0x20003')
    p.e(f's_add_u32 {s(S_RB)}, {s(S_T)}, {s(S_T+1)}')
    p.e(f's_bfe_u32 {s(S_T)}, s2, 0x20001')
    p.e(f's_lshl_b32 {s(S_T)}, {s(S_T)}, 3')
    p.e(f's_lshr_b32 {s(S_T+1)}, s2, 5')
    p.e(f's_add_u32 {s(S_C2)}, {s(S_T)}, {s(S_T+1)}')
    dma_x_offs(p, V_DX2, 1280)
    B0, LIM, STR = S_T + 2, S_T + 6, S_T + 7
    p.e(f's_cmp_lt_u32 {s(S_C2)}, 22')
    p.e(f's_cselect_b32 {s(S_SX2)}, {s(ptr("B_x"))}, {s(ptr("A_x"))}')
    p.e(f's_cselect_b32 {s(S_SX2+1)}, {s(ptr("B_x")+1)}, {s(ptr("A_x")+1)}')
    p.e(f's_cselect_b32 {s(S_SW2)}, {s(ptr("B_w_q"))}, {s(ptr("A_wqkv"))}')
    p.e(f's_cselect_b32 {s(S_SW2+1)}, {s(ptr("B_w_q")+1)}, {s(ptr("A_wqkv")+1)}')
    p.e(f's_movk_i32 {s(STR)}, 3840')
    p.e(f's_cselect_b32 {s(STR)}, 8192, {s(STR)}')
    p.e(f's_cselect_b32 {s(S_T)}, 0, 22')
    p.e(f's_mul_i32 {s(S_SW2+2)}, {s(STR)}, 640')
    p.e(f's_sub_u32 {s(S_T)}, {s(S_C2)}, {s(S_T)}')
    p.e(f's_mul_i32 {s(B0)}, {s(S_T)}, 384')
    p.e(f's_cmp_eq_u32 {s(S_C2)}, 21')
    p.e(f's_cselect_b32 {s(LIM)}, 8, 24')
    for par in range(2):
        p.e(f'v_mov_b32 {v(V_DW2+par)}, {s(B0)}')
    p.e(f's_cmp_lt_u32 {s(S_C2)}, 24')
    p.e('s_cbranch_scc1 K1_NOTKV')
    p.e(f's_sub_u32 {s(S_T)}, {s(S_C2)}, 24')
    p.e(f's_mul_i32 {s(S_T+1)}, {s(S_T)}, 160')
    p.e(f's_lshl_b32 {s(S_T)}, {s(S_T)}, 6')
    segs = [(24, S_T, 768+32-352), (22, S_T+1, 2560+80-272), (17, S_T+1, 1280+80-192), (12, S_T, 768-160),
            (10, S_T+1, 2560-80), (5, S_T+1, 1280)]
    for lim, sr, c0 in segs:
        p.e(f's_add_u32 {s(B0)}, {s(sr)}, {c0}')
        p.e(f'v_mov_b32 {v(t)}, {s(B0)}')
        for par in range(2):
            p.e(f'v_cmp_gt_u32 vcc, {lim}, {v(t+6+par)}')
            p.e(f'v_cndmask_b32 {v(V_DW2+par)}, {v(V_DW2+par)}, {v(t)}, vcc')
    p.label('K1_NOTKV')
    p.e(f's_lshl_b32 {s(S_WINC2)}, {s(STR)}, 5')
    p.e(f'v_mul_lo_u32 {v(t+4)}, {v(t+8)}, {s(STR)}')
    for par in range(2):
        c = t + 6 + par
        o = V_DW2 + par
        p.e(f'v_lshl_add_u32 {v(o)}, {v(c)}, 4, {v(o)}')
        p.e(f'v_add_u32 {v(o)}, {v(o)}, {v(t+4)}')
        p.e(f'v_cmp_gt_u32 vcc, {s(LIM)}, {v(c)}')
        p.e(f'v_cndmask_b32 {v(o)}, {v(5)}, {v(o)}, vcc')
    p.e(f's_lshl_b32 {s(S_T)}, {s(STR)}, 1')
    p.e(f's_sub_u32 {s(S_T)}, {s(S_T)}, 1024')
    p.e(f'v_add_u32 {v(V_DW2+1)}, {s(S_T)}, {v(V_DW2+1)}')
    p.e(f'v_lshlrev_b32 {v(V_L16)}, 4, {v(V_LANE)}')
    tail_setup(p)
    st_.stamp(1)
    p.e(f's_waitcnt vmcnt(16)')
    p.e('s_barrier')
    st_.stamp(2)
    first_reads(p, 4)
    p.e(f's_mov_b32 {s(S_CNT)}, 0')
    p.e(f's_cmp_eq_u32 {s(S_ISV)}, 0')
    p.e('s_cbranch_scc0 K1_LOOPV')
    for orient, lab in ((0, 'K1_LOOPK'), (1, 'K1_LOOPV')):
        p.label(lab)
        stage(p, 0, 8, 4, orient, V_ACC, lambda: in_prefetch(p))
        p.e(f's_cmp_lg_u32 {s(S_CNT)}, 5')
        p.e(f's_cbranch_scc1 {lab}_NS')
        for i in range(2):
            p.e(f's_mov_b32 {s(S_SX+i)}, {s(S_SX2+i)}')
        p.e(f's_mov_b32 {s(S_SX+2)}, {2048*1280}')
        p.e(f's_mov_b32 {s(S_XOFF)}, 0')
        p.e(f's_mov_b32 {s(S_XI[0])}, {16*1280}')
        p.e(f's_mov_b32 {s(S_XI[1])}, {128-16*1280}')
        for i in range(2):
            p.e(f'v_mov_b32 {v(V_DX+i)}, {v(V_DX2+i)}')
        if PF & 2:
            for i in range(3):
                p.e(f's_mov_b32 {s(S_PF+i)}, {s(S_TP+i)}')
            p.e(f's_mov_b32 {s(S_PFO)}, {s(S_TP+3)}')
            p.e(f's_movk_i32 {s(S_PFI)}, 1024')
            p.e(f'v_mov_b32 {v(6)}, {v(3)}')
        p.label(f'{lab}_NS')
        stage(p, 1, 8, 4, orient, V_ACC, lambda: in_prefetch(p))
        p.e(f's_add_u32 {s(S_CNT)}, {s(S_CNT)}, 1')
        if stamps:
            p.e(f's_and_b32 s92, {s(S_CNT)}, 1')
            p.e(f's_cbranch_scc1 {lab}_NOST')
            p.e(f's_lshr_b32 s92, {s(S_CNT)}, 1')
            p.e(f's_add_u32 s92, s92, 2')
            st_.stamp_dyn(92)
            p.label(f'{lab}_NOST')
        p.e(f's_cmp_lg_u32 {s(S_CNT)}, 6')
        p.e(f's_cbranch_scc1 {lab}_NW')
        for i in range(3):
            p.e(f's_mov_b32 {s(S_SW+i)}, {s(S_SW2+i)}')
        p.e(f's_mov_b32 {s(S_WOFF)}, 0')
        p.e(f's_mov_b32 {s(S_WINC)}, {s(S_WINC2)}')
        for i in range(2):
            p.e(f'v_mov_b32 {v(V_DW+i)}, {v(V_DW2+i)}')
        p.label(f'{lab}_NW')
        p.e(f's_cmp_lt_u32 {s(S_CNT)}, 8')
        p.e(f's_cbranch_scc1 {lab}')
        if orient == 0:
            p.e('s_branch K1_EPI1')
    p.label('K1_EPI1')
    p.e(f's_and_b32 {s(S_T)}, {s(S_W)}, 3')
    p.e(f's_lshl_b32 {s(S_ROWB)}, {s(S_T)}, 6')
    p.e(f's_lshr_b32 {s(S_T)}, {s(S_W)}, 2')
    p.e(f's_mul_i32 {s(S_NTB)}, {s(S_T)}, 6')
    read_addrs(p, 6)
    first_reads(p, 6)
    t = V_ST
    p.e(f's_mov_b32 {s(S_PF+2)}, 0')
    p.e(f'v_bfe_u32 {v(t)}, {v(V_LANE)}, 1, 2')
    p.e(f'v_mul_u32_u24 {v(t)}, 1280, {v(t)}')
    p.e(f'v_lshrrev_b32 {v(t+1)}, 3, {v(V_LANE)}')
    p.e(f'v_lshl_add_u32 {v(t)}, {v(t+1)}, 5, {v(t)}')
    p.e(f'v_and_b32 {v(t+1)}, 16, {v(V_L16)}')
    p.e(f'v_add3_u32 {v(V_DX2+1)}, {v(t)}, {v(t+1)}, {s(S_T+15)}')
    p.e(f'v_subrev_u32 {v(V_DX2)}, {XU-1024}, {v(V_DX2+1)}')
    p.e(f'v_subrev_u32 {v(V_DX2+1)}, {XU-256}, {v(V_DX2+1)}')
    for i in range(64):
        p.e(f'v_cvt_pk_bf16_f32 {v(V_PK+i)}, {v(V_ACC+2*i)}, {v(V_ACC+2*i+1)}')
    for i in range(96):
        p.e(f'v_mov_b32 {v(V_ACC2+i)}, 0')
    p.e(f's_mov_b32 {s(S_CNT)}, 0')
    p.e(f's_mov_b32 {s(S_IDX)}, 0')
    st_.stamp(7)
    p.label('K1_LOOP2')

    def dstore(k):
        def f():
            p.e(f's_cmp_ge_u32 {s(S_CNT)}, {0 if NOST else 8}')
            p.e(f's_cbranch_scc1 K1_NODS{k}')
            p.e(f's_set_gpr_idx_on {s(S_IDX)}, 0x1')
            for j in range(4):
                p.e(f'v_mov_b32 {v(V_ST+4*k+j)}, {v(V_PK+4*k+j)}')
            p.e('s_set_gpr_idx_off')
            p.e(f'buffer_store_dwordx4 {v(V_ST+4*k,4)}, {v(V_L16)}, {s(S_WS,4)}, {s(S_OUT)} offen offset:{1024*k}{SM}')
            if k == 1:
                p.e(f's_add_u32 {s(S_IDX)}, {s(S_IDX)}, 8')
                p.e(f's_add_u32 {s(S_OUT)}, {s(S_OUT)}, {s(S_OINC)}')
                p.e(f's_xor_b32 {s(S_OINC)}, {s(S_OINC)}, {s(S_OX)}')
            p.e(f's_branch K1_DS{k}')
            p.label(f'K1_NODS{k}')
            in_prefetch(p)
            p.label(f'K1_DS{k}')
        return f
    stage(p, 0, 4, 6, 0, V_ACC2, dstore(0))
    p.e(f's_cmp_lt_u32 {s(S_CNT)}, 7')
    p.e('s_cbranch_scc1 K1_LOOP2_NS')
    for i in range(3):
        p.e(f's_mov_b32 {s(S_SX+i)}, {s(S_TX+i)}')
    p.e(f's_mov_b32 {s(S_XOFF)}, {s(S_OFF2)}')
    p.e(f's_movk_i32 {s(S_XI[0])}, 512')
    p.e(f's_add_u32 {s(S_OFF2)}, {s(S_OFF2)}, 1024')
    for i in range(2):
        p.e(f'v_mov_b32 {v(V_DX+i)}, {v(V_DX2+i)}')
    p.e(f'v_mov_b32 {v(V_DX2+1)}, {v(5)}')
    p.label('K1_LOOP2_NS')
    stage(p, 1, 4, 6, 0, V_ACC2, dstore(1))
    p.e(f's_add_u32 {s(S_CNT)}, {s(S_CNT)}, 1')
    if stamps:
        p.e(f's_and_b32 s92, {s(S_CNT)}, 1')
        p.e(f's_cbranch_scc1 K1_L2_NOST')
        p.e(f's_lshr_b32 s92, {s(S_CNT)}, 1')
        p.e(f's_add_u32 s92, s92, 7')
        st_.stamp_dyn(92)
        p.label(f'K1_L2_NOST')
    p.e(f's_cmp_lt_u32 {s(S_CNT)}, 8')
    p.e('s_cbranch_scc1 K1_LOOP2')
    for i in range(3):
        p.e(f's_mov_b32 {s(S_SW+i)}, {s(S_TW+i)}')
    p.e(f's_mov_b32 {s(S_WOFF)}, 0')
    p.e(f's_mov_b32 {s(S_WINC)}, 0')
    for i in range(2):
        p.e(f'v_mov_b32 {v(V_DW+i)}, {v(V_L16)}')
    p.e(f's_cmp_eq_u32 {s(S_CNT)}, 8')
    p.e('s_cbranch_scc1 K1_LOOP2')
    stage(p, 0, 4, 6, 0, V_ACC2, None, dma=False)
    p.e(f's_cmp_ge_u32 {s(S_C2)}, 22')
    p.e('s_cbranch_scc1 K1_EPIA')
    t = V_ST
    QO, SC = S_T + 2, S_T + 6
    pre = []
    e = pre.append
    e(f's_mul_i32 {s(S_T)}, {s(S_W)}, 640')
    e(f's_add_u32 {s(S_T)}, {s(S_T)}, {L_X}')
    e(f'v_lshrrev_b32 {v(t)}, 4, {v(V_LANE)}')
    e(f'v_lshl_add_u32 {v(t)}, {v(t)}, 12, {s(S_T)}')
    e(f'v_and_b32 {v(t+1)}, 15, {v(V_LANE)}')
    e(f'v_lshl_add_u32 {v(t)}, {v(t+1)}, 3, {v(t)}')
    e([f's_cmp_ge_u32 {s(S_W)}, 6', f's_cselect_b32 {s(S_T)}, {XU-4096}, 0'])
    e(f'v_add_u32 {v(t+1)}, {s(S_T)}, {v(t)}')
    e([f's_cmp_ge_u32 {s(S_W)}, 7', f's_cselect_b32 {s(S_T)}, {XU-4096}, 0'])
    e(f'v_add_u32 {v(t)}, {s(S_T)}, {v(t)}')
    e(f's_mul_i32 {s(S_OFF2)}, {s(S_W)}, {NSTEP}')
    e(f's_add_u32 {s(S_OFF2)}, {s(S_OFF2)}, {s(S_STEP)}')
    e(f's_mul_i32 {s(S_OFF2)}, {s(S_OFF2)}, 5120')
    e(f's_add_u32 {s(S_OFF2)}, {s(S_OFF2)}, {WS_WF}')
    e([f's_cmp_lt_u32 {s(S_STEP)}, {NSTEP}', f's_cselect_b32 {s(S_OFF2)}, {s(S_OFF2)}, {OOB}'])
    e(f's_add_u32 {s(S_STEP)}, {s(S_OFF2)}, 4096')
    e(f's_mul_i32 {s(S_T)}, {s(S_C2)}, 6')
    e(f's_lshr_b32 {s(S_T+1)}, {s(S_NTB)}, 1')
    e(f's_add_u32 {s(S_T)}, {s(S_T)}, {s(S_T+1)}')
    e(f's_lshl_b32 {s(S_T+1)}, {s(S_RB)}, 16')
    e(f's_lshl_b32 {s(SC)}, {s(S_ROWB)}, 8')
    e(f's_add_u32 {s(S_T+1)}, {s(S_T+1)}, {s(SC)}')
    for a3 in range(3):
        e(f's_lshr_b32 {s(QO+a3)}, {s(S_T)}, 2')
        e(f's_lshl_b32 {s(QO+a3)}, {s(QO+a3)}, 19')
        e(f's_and_b32 {s(SC)}, {s(S_T)}, 3')
        e(f's_lshl_b32 {s(SC)}, {s(SC)}, 10')
        e(f's_add_u32 {s(QO+a3)}, {s(QO+a3)}, {s(SC)}')
        e(f's_add_u32 {s(QO+a3)}, {s(QO+a3)}, {s(S_T+1)}')
        e([f's_cmp_lt_u32 {s(S_T)}, 128', f's_cselect_b32 {s(QO+a3)}, {s(QO+a3)}, {OOB}'])
        e(f's_add_u32 {s(S_T)}, {s(S_T)}, 1')
    e(f's_mov_b32 {s(SC)}, {f32hex(QSCALE)}')
    e(f's_mov_b32 {s(SC+1)}, {s(SC)}')

    def qep(st, dbase):
        L = []
        for a3 in range(3):
            a = V_ACC2 + 4 * (st * 6 + 2 * a3)
            d = dbase + 4 * a3
            for j in range(4):
                L.append(f'v_pk_mul_f32 {v(a+2*j,2)}, {v(a+2*j,2)}, {s(SC,2)}')
            for j in range(4):
                L.append(f'v_cvt_pk_bf16_f32 {v(d+j)}, {v(a+2*j)}, {v(a+2*j+1)}')
            L.append([f'buffer_store_dwordx4 {v(d,4)}, {v(V_L16)}, {s(S_WS,4)}, {s(QO+a3)} offen{SM}',
                      f's_add_u32 {s(QO+a3)}, {s(QO+a3)}, 4096'])
        return L
    post = [f'ds_read_b64_tr_b16 {v(V_PK+4*k+2*j,2)}, {v(t+(k>=2))} offset:{128*k+16384*j}' for k in range(5) for j in range(2)]
    post += qep(0, V_WF) + qep(1, V_WF + 12)
    last_stage(p, pre, post)
    st_.stamp(12)
    for k in range(5):
        p.e(f'buffer_store_dwordx4 {v(V_PK+4*k,4)}, {v(V_L16)}, {s(S_WS,4)}, {s(S_OFF2 if k < 4 else S_STEP)} offen offset:{1024*(k&3)}')
    p.ext(qep(2, V_PK + 32) + qep(3, V_PK + 44))
    p.e('s_branch K1_FIN')
    p.label('K1_EPIA')
    p.e(f'v_lshrrev_b32 {v(3)}, 4, {v(V_LANE)}')
    p.e(f'v_lshlrev_b32 {v(3)}, 14, {v(3)}')
    p.e(f'v_and_b32 {v(5)}, 15, {v(V_LANE)}')
    p.e(f'v_lshl_add_u32 {v(3)}, {v(5)}, 3, {v(3)}')
    p.e(f's_lshl_b32 {s(S_T+1)}, {s(S_RB)}, 11')
    p.e(f's_lshl_b32 {s(S_T+2)}, {s(S_ROWB)}, 3')
    p.e(f's_add_u32 {s(S_T+1)}, {s(S_T+1)}, {s(S_T+2)}')
    p.e(f's_add_u32 {s(S_T+1)}, {s(S_T+1)}, {WS_QA}')
    p.e(f's_cmp_ge_u32 {s(S_C2)}, 24')
    p.e('s_cbranch_scc1 K1_EPIKV')
    pre = [f's_sub_u32 {s(S_T)}, {s(S_C2)}, 22',
           f's_mul_i32 {s(S_T)}, {s(S_T)}, 48',
           f's_lshl_b32 {s(S_T+2)}, {s(S_NTB)}, 2',
           f's_add_u32 {s(S_T)}, {s(S_T)}, {s(S_T+2)}',
           f's_lshl_b32 {s(S_T)}, {s(S_T)}, 14',
           f's_add_u32 {s(S_T)}, {s(S_T)}, {s(S_T+1)}',
           f's_mov_b32 {s(S_T+1)}, {s(S_T)}']

    def qa(h):
        L = []
        for nt in range(6):
            for st in (2 * h, 2 * h + 1):
                a = V_ACC2 + 4 * (st * 6 + nt)
                d = V_PK + 2 * (st * 6 + nt)
                for j in range(2):
                    L.append(f'v_cvt_pk_bf16_f32 {v(d+j)}, {v(a+2*j)}, {v(a+2*j+1)}')
                L.append(f'buffer_store_dwordx2 {v(d,2)}, {v(3)}, {s(S_WS,4)}, {s(S_T+h)} offen offset:{st*128}')
            L.append(f's_add_u32 {s(S_T+h)}, {s(S_T+h)}, 65536')
        return L
    last_stage(p, pre, qa(0))
    st_.stamp(12)
    p.ext(qa(1))
    p.e('s_branch K1_FIN')
    p.label('K1_EPIKV')
    p.e(f's_sub_u32 {s(S_T)}, {s(S_C2)}, 24')
    p.e(f's_lshl_b32 {s(S_T)}, {s(S_T)}, 3')
    p.e(f's_and_b32 {s(S_T+2)}, {s(S_W)}, 4')
    p.e(f's_add_u32 {s(S_T)}, {s(S_T)}, {s(S_T+2)}')
    p.e(f's_add_u32 {s(S_T)}, {s(S_T)}, 96')
    p.e(f's_lshl_b32 {s(S_T)}, {s(S_T)}, 14')
    p.e(f's_add_u32 {s(S_T)}, {s(S_T)}, {s(S_T+1)}')
    import k1a2
    k1a2.emit(p, globals(), st_)
    p.label('K1_FIN')
    st_.stamp(13)
    st_.flush(S_WS, S_W, WS_STAMP, 23, 6)
    p.label('K1_END')
    p.e('s_endpgm')
    p.finalize()
    return p
```

```python
from asmlib import *
from layout import *
import struct

L_A = 32768
L_V = 128
L_PHI = L_A + 43264
VSTR = 168
PSTR = 328


def f32hex(x):
    return '0x%08x' % struct.unpack('<I', struct.pack('<f', x))[0]


def softmax1(p, P, T, sL, out):
    mx = T
    L = []
    e = L.append
    e(f'v_max3_f32 {v(mx)}, {v(P)}, {v(P+1)}, {v(P+2)}')
    e(f'v_max3_f32 {v(mx+1)}, {v(P+3)}, {v(P+4)}, {v(P+5)}')
    for i in range(6, 18, 4):
        e(f'v_max3_f32 {v(mx)}, {v(mx)}, {v(P+i)}, {v(P+i+1)}')
        e(f'v_max3_f32 {v(mx+1)}, {v(mx+1)}, {v(P+i+2)}, {v(P+i+3)}')
    e(f'v_max3_f32 {v(mx)}, {v(mx)}, {v(P+18)}, {v(P+19)}')
    e(f'v_max_f32 {v(mx)}, {v(mx)}, {v(mx+1)}')
    e(f'v_mul_f32 {v(mx)}, {s(sL)}, {v(mx)}')
    for i in range(0, 20, 2):
        e(f'v_pk_fma_f32 {v(P+i,2)}, {v(P+i,2)}, {s(sL,2)}, {v(mx,2)} op_sel_hi:[1,1,0] neg_lo:[0,0,1] neg_hi:[0,0,1]')
    for i in range(20):
        e(f'v_exp_f32 {v(P+i)}, {v(P+i)}')
    e(f'v_pk_add_f32 {v(mx,2)}, {v(P,2)}, {v(P+2,2)}')
    e(f'v_pk_add_f32 {v(mx+2,2)}, {v(P+4,2)}, {v(P+6,2)}')
    for i in range(8, 20, 4):
        e(f'v_pk_add_f32 {v(mx,2)}, {v(mx,2)}, {v(P+i,2)}')
        e(f'v_pk_add_f32 {v(mx+2,2)}, {v(mx+2,2)}, {v(P+i+2,2)}')
    e(f'v_pk_add_f32 {v(mx,2)}, {v(mx,2)}, {v(mx+2,2)}')
    e(f'v_add_f32 {v(mx)}, {v(mx)}, {v(mx+1)}')
    e(f'v_rcp_f32 {v(mx)}, {v(mx)}')
    for i in range(0, 20, 2):
        e(f'v_pk_mul_f32 {v(P+i,2)}, {v(P+i,2)}, {v(mx,2)} op_sel_hi:[1,0]')
    for i in range(10):
        e(f'v_cvt_pk_bf16_f32 {v(out+i)}, {v(P+2*i)}, {v(P+2*i+1)}')
    return L


def emit(p, G, st_):
    g = type('G', (), G)
    V_LANE, V_L16, V_ACC2, S_W, S_T, S_WS = g.V_LANE, g.V_L16, g.V_ACC2, g.S_W, g.S_T, g.S_WS
    t = 8
    MF = 96
    B = 40
    pre = []
    e = pre.append
    e(f's_lshl_b32 {s(S_T+3)}, {s(S_W)}, 11')
    e(f's_add_u32 {s(S_T+2)}, {s(S_T+3)}, 1600')
    e(f'v_lshrrev_b32 {v(t)}, 2, {v(V_LANE)}')
    e(f'v_bfe_u32 {v(t+1)}, {v(V_LANE)}, 1, 1')
    e(f'v_mul_u32_u24 {v(t+1)}, 20, {v(t+1)}')
    e(f'v_sub_u32 {v(t+1)}, {v(t)}, {v(t+1)}')
    e(f'v_mad_u32_u24 {v(t)}, 40, {v(t)}, {s(S_T+3)}')
    e(f'v_mov_b32 {v(t+2)}, {s(S_T+2)}')
    for m in range(3):
        e(f'v_add_u32 {v(t+3)}, {16*m}, {v(t+1)}')
        e(f'v_cmp_gt_u32 vcc, 20, {v(t+3)}')
        e(f'v_add_u32 {v(t+4+m)}, {640*m}, {v(t)}')
        e(f'v_mov_b32 {v(MF+8*m+6)}, 0')
        e(f'v_cndmask_b32 {v(t+4+m)}, {v(t+2)}, {v(t+4+m)}, vcc')
    for tt in range(5):
        if tt >= 3:
            e(f'v_mov_b32 {v(MF+8*tt+6)}, 0')
        e(f'v_mov_b32 {v(MF+8*tt+7)}, 0')
    SGN = t + 7
    e(f'v_lshlrev_b32 {v(t)}, 29, {v(V_LANE)}')
    e(f'v_and_b32 {v(t)}, 0x80000000, {v(t)}')
    e(f'v_lshrrev_b32 {v(SGN)}, 16, {v(t)}')
    e(f'v_or_b32 {v(SGN)}, {v(SGN)}, {v(t)}')
    e(f'v_and_b32 {v(t+2)}, 15, {v(V_LANE)}')
    e(f'v_add_u32 {v(t+2)}, {s(g.S_ROWB)}, {v(t+2)}')
    e(f'v_lshrrev_b32 {v(t+3)}, 4, {v(V_LANE)}')
    e(f's_lshr_b32 {s(S_T+2)}, {s(S_W)}, 2')
    e(f's_mul_i32 {s(S_T+2)}, {s(S_T+2)}, 80')
    e(f's_lshl1_add_u32 {s(S_T+3)}, {s(S_T+2)}, {L_PHI}')
    AV, AO, AP, ONE = t + 8, t + 9, t + 10, t + 12
    e(f'v_mul_u32_u24 {v(AO)}, {VSTR}, {v(t+2)}')
    e(f'v_lshl_add_u32 {v(AV)}, {v(t+3)}, 3, {v(AO)}')
    e(f'v_add_u32 {v(AV)}, {s(S_T+2)}, {v(AV)}')
    e(f'v_mul_u32_u24 {v(AP)}, {PSTR}, {v(t+2)}')
    e(f'v_mad_u32_u24 {v(AP)}, 40, {v(t+3)}, {v(AP)}')
    e(f'v_add_u32 {v(AP)}, {s(S_T+3)}, {v(AP)}')
    e(f'v_mov_b32 {v(ONE)}, 0x3f803f80')
    e(f'v_mov_b32 {v(ONE+1)}, 0x3f803f80')
    sL = S_T + 2
    e(f's_mov_b32 {s(sL)}, {f32hex(1.4426950408889634)}')
    e(f's_mov_b32 {s(sL+1)}, {s(sL)}')

    def cv(st):
        return [f'v_cvt_pk_bf16_f32 {v(B+12*st+i)}, {v(V_ACC2+24*st+2*i)}, {v(V_ACC2+24*st+2*i+1)}' for i in range(12)]
    post = [f'ds_read_b64_tr_b16 {v(MF+8*tt+2*m,2)}, {v(t+4+m)} offset:{8*tt}' for tt in range(5) for m in range(3)]
    post += cv(0) + cv(1)
    post += [f'v_xor_b32 {v(MF+8*tt+i)}, {v(SGN)}, {v(MF+8*tt+i)}' for tt in range(5) for i in range(6)]
    G['last_stage'](p, pre, post)
    st_.stamp(12)

    def mm(st):
        return [f'v_mfma_f32_16x16x32_bf16 {v(V_ACC2+20*st+4*tt,4)}, {v(MF+8*tt+4*a,4)}, {v(B+12*st+4*a,4)}, '
                + (v(V_ACC2 + 20 * st + 4 * tt, 4) if a else '0') for a in range(2) for tt in range(5)]
    LV = L_A + L_V

    def wv(st):
        wr = []
        for nt in (3, 4):
            wr.append(f'ds_write_b64 {v(AV)}, {v(B+12*st+2*nt,2)} offset:{LV+st*16*VSTR+32*nt-80}')
        wr.append(f'ds_write_b64 {v(AO)}, {v(ONE,2)} offset:{LV+st*16*VSTR+160}')
        wr.append(f'buffer_store_dwordx2 {v(B+12*st+10,2)}, {v(3)}, {s(S_WS,4)}, {s(S_T)} offen offset:{st*128}')
        return wr
    m01 = mm(0) + mm(1)
    for m, x in zip(m01, interleave(m01, wv(0) + wv(1) + cv(2) + cv(3) + wv(2) + wv(3), 0, 20)):
        p.e(m)
        p.ext(x)
    p.e('s_mov_b32 exec_lo, 0')
    for st in range(4):
        p.e(f'ds_write_b64 {v(AV)}, {v(B+12*st+4,2)} offset:{LV+st*16*VSTR+64-80}')
    p.e('s_mov_b32 exec_lo, -1')
    st_.stamp(16)

    def sm(st, mf=None):
        out = 136 + 10 * (st & 1)
        L = softmax1(p, V_ACC2 + 20 * st, 156, sL, out)
        if mf:
            sl = interleave(L, mf, 23, 43)
            for x, y in zip(L, sl):
                p.e(x)
                p.ext(y)
        else:
            p.ext(L)
        for i in range(5):
            p.e(f'ds_write_b64 {v(AP)}, {v(out+2*i,2)} offset:{st*16*PSTR+8*i}')
    sm(0, mm(2))
    st_.stamp(17)
    sm(1, mm(3))
    sm(2)
    sm(3)
    st_.stamp(20)
    p.label('A2_S2')
    p.e(f'v_bfe_u32 {v(t)}, {v(V_LANE)}, 2, 2')
    p.e(f'v_lshrrev_b32 {v(t+2)}, 5, {v(V_LANE)}')
    p.e(f'v_lshl_add_u32 {v(t)}, {v(t+2)}, 3, {v(t)}')
    p.e(f'v_bfe_u32 {v(t+2)}, {v(V_LANE)}, 4, 1')
    p.e(f'v_and_b32 {v(t+3)}, 3, {v(V_LANE)}')
    p.e(f'v_lshl_add_u32 {v(t+2)}, {v(t+2)}, 2, {v(t+3)}')
    p.e(f'v_min_u32 {v(t+3)}, 4, {v(t+2)}')
    p.e(f's_mul_i32 {s(S_T)}, {s(S_W)}, 40')
    p.e(f's_add_u32 {s(S_T)}, {s(S_T)}, {L_PHI}')
    p.e(f'v_mul_u32_u24 {v(t+4)}, {PSTR}, {v(t)}')
    p.e(f'v_lshl_add_u32 {v(t+4)}, {v(t+3)}, 3, {v(t+4)}')
    p.e(f'v_add_u32 {v(t+4)}, {s(S_T)}, {v(t+4)}')
    p.e(f'v_add_u32 {v(t+5)}, {128*PSTR}, {v(t+4)}')
    p.e(f's_lshr_b32 {s(S_T)}, {s(S_W)}, 1')
    p.e(f's_mul_i32 {s(S_T)}, {s(S_T)}, 40')
    p.e(f'v_lshlrev_b32 {v(t+3)}, 3, {v(t+3)}')
    p.e(f'v_add_u32 {v(t+3)}, {s(S_T)}, {v(t+3)}')
    p.e(f'v_mov_b32 {v(t+6)}, 160')
    p.e(f'v_cmp_lt_u32 vcc, 4, {v(t+2)}')
    p.e(f'v_cndmask_b32 {v(t+3)}, {v(t+3)}, {v(t+6)}, vcc')
    p.e(f'v_mul_u32_u24 {v(t+6)}, {VSTR}, {v(t)}')
    p.e(f'v_add3_u32 {v(t+6)}, {v(t+6)}, {v(t+3)}, {s(S_T+15)}')
    p.e(f's_sub_u32 {s(S_T)}, {s(g.S_C2)}, 24')
    p.e(f's_lshl_b32 {s(S_T)}, {s(S_T)}, 3')
    p.e(f's_add_u32 {s(S_T)}, {s(S_T)}, {s(S_W)}')
    p.e(f's_lshl_b32 {s(S_T+1)}, {s(g.S_RB)}, 6')
    p.e(f's_add_u32 {s(S_T)}, {s(S_T)}, {s(S_T+1)}')
    p.e(f's_mul_i32 {s(S_T)}, {s(S_T)}, 3072')
    p.e(f's_add_u32 {s(S_T)}, {s(S_T)}, {WS_KVP}')
    p.e('s_waitcnt lgkmcnt(0)')
    p.e('s_barrier')
    st_.stamp(21)
    F = 64
    D = v(48, 16)

    def rd(k):
        for j in range(2):
            p.e(f'ds_read_b64_tr_b16 {v(F+8*k+2*j,2)}, {v(t+4+(k>>3))} offset:{(16*(k&7)+4*j)*PSTR}')
        for j in range(2):
            p.e(f'ds_read_b64_tr_b16 {v(F+8*k+4+2*j,2)}, {v(t+6)} offset:{L_V+(16*k+4*j)*VSTR}')
    for k in range(3):
        rd(k)
    for k in range(16):
        if k + 3 < 16:
            rd(k + 3)
        p.e(f'v_mfma_f32_32x32x16_bf16 {D}, {v(F+8*k,4)}, {v(F+8*k+4,4)}, {D if k else 0}')
    st_.stamp(22)
    for i in range(3):
        p.e(f'buffer_store_dwordx4 {v(48+4*i,4)}, {v(V_L16)}, {s(S_WS,4)}, {s(S_T)} offen offset:{1024*i}')
```

```python
from asmlib import *
from layout import *
import struct, os


def f32hex(x):
    return '0x%08x' % struct.unpack('<I', struct.pack('<f', x))[0]


V_LANE = 1
V_L16 = 2
V_DMA = 3
V_KA = 4
V_VA = 5
V_LA = 8
V_LB = 10
V_T = 12
V_NM = 16
V_E = 24
V_PA = 32
V_PB = 40
V_SA = 48
V_SB = 64
V_Q = 80
V_FA = 112
V_FB = 144
V_O = 176
V_X = 240

S_W = 3
S_H = 4
S_I = 5
S_G = 6
S_WQ = 7
S_PTR = 8
S_WS = 36
S_SK = 40
S_SV = 44
S_A = 48
S_N = 52
S_TT = 53
S_KOFF = 54
S_VOFF = 55
S_LIM = 56
S_D = 57
S_DN = 58
S_ALT = 59
S_Q0 = 60
S_Q1 = 61
S_TR = 62
S_THR = 63
S_THRE = 64
S_FLOOR = 65
S_MK = 66
S_MV = 67
S_LIM2 = 68
S_CO = 69
S_CO1 = 70
S_NINF = 71
S_MSK = 72
S_T = 80

L_K = 0
L_V = 65536
L_Q = 131072
L_WFB = 98304
L_WFA = 122880
L_KVF = 147456
L_WI = 150528
OOB = 0x7FF00000
THR = 2.0 ** 100


def ptr(name):
    return S_PTR + KA[name] // 4


def O(dt, qt):
    return V_O + 4 * (((dt >> 1) * 2 + qt) * 2 + (dt & 1))


FAKE = int(os.environ.get('FAKE', '0'))
PRIO = int(os.environ.get('PRIO', '0'))


def pv(P):
    if FAKE & 1:
        L = []
        for D in range(4):
            for t in range(2):
                L.append(f'v_mfma_f32_32x32x16_bf16 {v(V_O+16*D,16)}, {v(V_FA+4*(2*D+t),4)}, {v(P+4*t,4)}, {v(V_O+16*D,16)}')
                L.append('')
        return L
    return [f'v_mfma_f32_16x16x32_bf16 {v(O(dt,qt),4)}, {v(V_FA+4*dt,4)}, {v(P+4*qt,4)}, {v(O(dt,qt),4)}'
            for dt in range(8) for qt in range(2)]


def qk(S, F=V_FB):
    L = []
    if FAKE & 2:
        for j in range(8):
            L.append(f'v_mfma_f32_32x32x16_bf16 {v(S,16)}, {v(F+4*j,4)}, {v(V_Q+4*j,4)}, {v(S,16) if j else v(V_X,16)}')
            L.append('')
        return L
    for kt in range(2):
        for ds in range(4):
            for qt in range(2):
                d = v(S + 4 * (2 * kt + qt), 4)
                c = d if ds else v(V_NM + 4 * qt, 4)
                L.append(f'v_mfma_f32_16x16x32_bf16 {d}, {v(F+4*(4*kt+ds),4)}, {v(V_Q+4*(4*qt+ds),4)}, {c}')
    return L


def kreads(a, F=V_FB):
    return [f'ds_read_b128 {v(F+4*j,4)}, {v(V_KA)} offset:{a*8192+j*1024}' for j in range(8)]


def vreads(a):
    return [f'ds_read_b128 {v(V_FA+4*j,4)}, {v(V_VA)} offset:{a*8192+j*1024}' for j in range(8)]


def sm_list(S, P, lold, lnew, thr):
    blocks = [(kt, qt) for kt in range(2) for qt in range(2)]
    ex, post = [], []
    for b, (kt, qt) in enumerate(blocks):
        E = V_E + 4 * (b & 1)
        src = S + 4 * (2 * kt + qt)
        ex.append([(f'v_exp_f32 {v(E+r)}, {v(src+r)}', 8) for r in range(4)])
        q = []
        for r in range(4):
            a = lold + qt if (kt == 0 and r == 0) else lnew + qt
            q.append((f'v_add_f32 {v(lnew+qt)}, {v(a)}, {v(E+r)}', 4))
            if r & 1:
                q.append((f'v_cvt_pk_bf16_f32 {v(P+4*qt+2*kt+(r>>1))}, {v(E+r-1)}, {v(E+r)}', 4))
        post.append(q)
    L = list(ex[0])
    for b in range(4):
        nx = ex[b + 1] if b < 3 else []
        q = post[b]
        order = [q[0], 0, q[1], q[2], 1, q[3], 2, q[4], q[5], 3]
        for o in order:
            if isinstance(o, int):
                if nx:
                    L.append(nx[o])
            else:
                L.append(o)
    if FAKE == 1:
        for i in range(4):
            L.append((f'v_permlane16_swap_b32 {v(P+i)}, {v(P+4+i)}', 4))
    if thr is not None:
        L.append((f'v_max_f32 {v(V_T)}, {v(lnew)}, {v(lnew+1)}', 4))
        L.append((f'v_cmp_lt_f32 vcc, {s(thr)}, {v(V_T)}', 4))
    return L


def spread(L, n, start, end):
    tot = sum(c for _, c in L)
    slots = [[] for _ in range(n)]
    acc = 0
    for ins, c in L:
        k = start + int((acc + c / 2) * (end - start) / tot)
        slots[min(k, end - 1)].append(ins)
        acc += c
    return slots


def dma_tile(p, off, lim, srd, mbase, lab):
    p.e(f's_cmp_lt_u32 {s(off)}, {s(lim)}')
    p.e(f's_cbranch_scc0 {lab}')
    p.e(f's_and_b32 {s(S_T)}, {s(off)}, 0xc000')
    p.e(f's_add_u32 m0, {s(S_T)}, {s(mbase)}')
    p.e(f's_add_u32 {s(S_T+1)}, {s(off)}, 16384')
    p.e(f'buffer_load_dwordx4 {v(V_DMA)}, {s(srd,4)}, {s(off)} offen lds')
    p.e(f'buffer_load_dwordx4 {v(V_DMA)}, {s(srd,4)}, {s(off)} offen offset:1024 lds')
    p.e(f's_mov_b32 {s(off)}, {s(S_T+1)}')
    p.label(lab)


def dma_tile_u(p, off, srd, mbase):
    p.e(f's_and_b32 {s(S_T)}, {s(off)}, 0xc000')
    p.e(f's_add_u32 m0, {s(S_T)}, {s(mbase)}')
    p.e(f's_add_u32 {s(S_T+1)}, {s(off)}, 16384')
    p.e(f'buffer_load_dwordx4 {v(V_DMA)}, {s(srd,4)}, {s(off)} offen lds')
    p.e(f'buffer_load_dwordx4 {v(V_DMA)}, {s(srd,4)}, {s(off)} offen offset:1024 lds')
    p.e(f's_mov_b32 {s(off)}, {s(S_T+1)}')


def xreduce(p, op, regs, tmps):
    for sw in ('v_permlane16_swap_b32', 'v_permlane32_swap_b32'):
        for r, t in zip(regs, tmps):
            p.e(f'v_mov_b32 {v(t)}, {v(r)}')
        for r, t in zip(regs, tmps):
            p.e(f'{sw} {v(r)}, {v(t)}')
        for r, t in zip(regs, tmps):
            p.e(f'{op} {v(r)}, {v(r)}, {v(t)}')


def mask_block(p, S, lab, ret, dadj):
    p.label(lab)
    p.e(f's_cmp_eq_i32 {s(S_D)}, {-dadj}')
    p.e(f's_cbranch_scc1 {lab}_DG')
    for i in range(16):
        p.e(f'v_mov_b32 {v(S+i)}, {s(S_NINF)}')
    p.e(f's_branch {ret}')
    p.label(f'{lab}_DG')
    p.e(f'v_mov_b32 {v(V_T)}, {s(S_NINF)}')
    for r in range(4):
        p.e(f'v_cndmask_b32 {v(S+r)}, {v(S+r)}, {v(V_T)}, {s(S_MSK+2*r,2)}')
    for r in range(4):
        p.e(f'v_mov_b32 {v(S+8+r)}, {s(S_NINF)}')
    for r in range(4):
        p.e(f'v_cndmask_b32 {v(S+12+r)}, {v(S+12+r)}, {v(V_T)}, {s(S_MSK+2*r,2)}')
    p.e(f's_branch {ret}')


def slow_core(p, cur, nxt, P, lold, lnew, lab):
    mx = [V_T, V_T + 1]
    tm = [V_T + 2, V_T + 3]
    for qt in range(2):
        r = [cur + 4 * qt + i for i in range(4)] + [cur + 8 + 4 * qt + i for i in range(4)]
        p.e(f'v_max3_f32 {v(mx[qt])}, {v(r[0])}, {v(r[1])}, {v(r[2])}')
        p.e(f'v_max3_f32 {v(mx[qt])}, {v(mx[qt])}, {v(r[3])}, {v(r[4])}')
        p.e(f'v_max3_f32 {v(mx[qt])}, {v(mx[qt])}, {v(r[5])}, {v(r[6])}')
        p.e(f'v_max3_f32 {v(mx[qt])}, {v(mx[qt])}, {v(r[7])}, {s(S_FLOOR)}')
    xreduce(p, 'v_max_f32', mx, tm)
    for qt in range(2):
        for i in range(4):
            p.e(f'v_sub_f32 {v(V_NM+4*qt+i)}, {v(V_NM+4*qt+i)}, {v(mx[qt])}')
        for S in (cur, nxt):
            for kt in range(2):
                for i in range(4):
                    r = S + 8 * kt + 4 * qt + i
                    p.e(f'v_sub_f32 {v(r)}, {v(r)}, {v(mx[qt])}')
    p.e(f's_cmp_lg_u32 {s(S_FLOOR)}, 0')
    p.e(f's_cbranch_scc1 {lab}_NR')
    for qt in range(2):
        p.e(f'v_exp_f32 {v(tm[qt])}, -{v(mx[qt])}')
    for qt in range(2):
        p.e(f'v_mul_f32 {v(lold+qt)}, {v(lold+qt)}, {v(tm[qt])}')
        for dt in range(8):
            for i in range(4):
                r = O(dt, qt) + i
                p.e(f'v_mul_f32 {v(r)}, {v(r)}, {v(tm[qt])}')
    p.label(f'{lab}_NR')
    for ins, _ in sm_list(cur, P, lold, lnew, None):
        p.e(ins)
    p.e(f's_mov_b32 {s(S_FLOOR)}, 0')


def emit_groups(p, main, *slotlists):
    for i, m in enumerate(main):
        p.e(m)
        for sl in slotlists:
            for x in sl[i]:
                if callable(x):
                    x()
                else:
                    p.e(x)


def prologue_a(p, st_):
    pass


def build(name='k2_kernel', stamps=False):
    p = Prog()
    st_ = Stamps(p, 7, 90, stamps)
    p.e('s_cmp_ge_u32 s2, 256')
    p.e('s_cbranch_scc1 K2_END')
    st_.start()
    p.e(f's_load_dwordx4 {s(S_PTR+4,4)}, s[0:1], 16')
    p.e(f's_load_dwordx2 {s(ptr("B_w_o"),2)}, s[0:1], 72')
    p.e(f's_load_dwordx2 {s(ptr("ws"),2)}, s[0:1], 96')
    if int(os.environ.get('PF', '3')) & 4:
        code_prefetch(p, 6, 5, S_A, 'k2_kernel', 'K2_END', 'K2')
    p.e(f'v_lshrrev_b32 {v(2)}, 6, v0')
    p.e(f'v_and_b32 {v(V_LANE)}, 63, v0')
    p.e(f'v_readfirstlane_b32 {s(S_W)}, {v(2)}')
    p.e(f'v_lshlrev_b32 {v(V_L16)}, 4, {v(V_LANE)}')
    p.e(f's_and_b32 {s(S_T)}, s2, 7')
    p.e(f's_lshl_b32 {s(S_T)}, {s(S_T)}, 2')
    p.e(f's_bfe_u32 {s(S_H)}, s2, 0x20003')
    p.e(f's_add_u32 {s(S_H)}, {s(S_H)}, {s(S_T)}')
    p.e(f's_lshr_b32 {s(S_I)}, s2, 5')
    p.e(f's_lshr_b32 {s(S_G)}, {s(S_W)}, 2')
    p.e(f's_and_b32 {s(S_WQ)}, {s(S_W)}, 3')
    p.e(f's_lshl_b32 {s(S_MK)}, {s(S_W)}, 11')
    p.e(f's_add_u32 {s(S_MV)}, {s(S_MK)}, {L_V}')
    p.e(f'v_add_u32 {v(V_DMA)}, {s(S_MK)}, {v(V_L16)}')
    p.e(f's_lshl_b32 {s(S_TT)}, {s(S_I)}, 1')
    p.e(f's_sub_u32 {s(S_LIM)}, 32, {s(S_TT)}')
    p.e(f's_lshl_b32 {s(S_LIM)}, {s(S_LIM)}, 14')
    p.e(f's_add_u32 {s(S_TT)}, {s(S_TT)}, 2')
    p.e(f's_lshl_b32 {s(S_T)}, {s(S_I)}, 2')
    p.e(f's_add_u32 {s(S_Q0)}, {s(S_T)}, {s(S_WQ)}')
    p.e(f's_sub_u32 {s(S_Q1)}, 60, {s(S_T)}')
    p.e(f's_add_u32 {s(S_Q1)}, {s(S_Q1)}, {s(S_WQ)}')
    p.e(f's_sub_u32 {s(S_TR)}, {s(S_TT)}, 1')
    p.e(f's_cmp_eq_u32 {s(S_G)}, 0')
    p.e(f's_cselect_b32 {s(S_Q0)}, {s(S_Q0)}, {s(S_Q1)}')
    p.e(f's_cselect_b32 {s(S_TR)}, {s(S_TR)}, 99')
    p.e(f's_sub_u32 {s(S_ALT)}, {s(S_G)}, {s(S_TT)}')
    p.e(f's_mov_b32 {s(S_KOFF)}, 0')
    p.e(f's_mov_b32 {s(S_VOFF)}, 0')
    p.e(f's_lshl_b32 {s(S_T+2)}, {s(S_H)}, 19')
    for r in (S_WS, S_SK, S_SV, S_A):
        p.e(f's_mov_b32 {s(r+3)}, 0x00020000')
    p.e(f's_mov_b32 {s(S_WS+2)}, {WS_SIZE}')
    p.e(f's_mov_b32 {s(S_SK+2)}, 0x80000')
    p.e(f's_mov_b32 {s(S_SV+2)}, 0x80000')
    p.e(f's_add_u32 {s(S_T+3)}, {s(S_T+2)}, {WS_K}')
    p.e(f's_add_u32 {s(S_T+4)}, {s(S_T+2)}, {WS_V}')
    p.e('s_waitcnt lgkmcnt(0)')
    p.e(f's_mov_b32 {s(S_WS)}, {s(ptr("ws"))}')
    p.e(f's_mov_b32 {s(S_WS+1)}, {s(ptr("ws")+1)}')
    p.e(f's_add_u32 {s(S_SK)}, {s(ptr("ws"))}, {s(S_T+3)}')
    p.e(f's_addc_u32 {s(S_SK+1)}, {s(ptr("ws")+1)}, 0')
    p.e(f's_add_u32 {s(S_SV)}, {s(ptr("ws"))}, {s(S_T+4)}')
    p.e(f's_addc_u32 {s(S_SV+1)}, {s(ptr("ws")+1)}, 0')
    import k2a
    k2a.loads(p, globals())
    dma_tile_u(p, S_KOFF, S_SK, S_MK)
    p.e(f's_lshl_b32 {s(S_T+3)}, {s(S_Q0)}, 13')
    p.e(f's_add_u32 {s(S_T+3)}, {s(S_T+3)}, {s(S_T+2)}')
    p.e(f's_add_u32 {s(S_T+4)}, {s(S_T+3)}, 4096')
    for qt in range(2):
        for ds in range(4):
            p.e(f'buffer_load_dwordx4 {v(V_Q+4*(4*qt+ds),4)}, {v(V_L16)}, {s(S_WS,4)}, {s(S_T+3+qt)} offen offset:{ds*1024}')
    dma_tile_u(p, S_VOFF, S_SV, S_MV)
    dma_tile_u(p, S_KOFF, S_SK, S_MK)
    dma_tile_u(p, S_VOFF, S_SV, S_MV)
    dma_tile_u(p, S_KOFF, S_SK, S_MK)
    dma_tile_u(p, S_KOFF, S_SK, S_MK)
    for q, o in ((S_Q0, S_CO), (S_Q1, S_CO1)):
        p.e(f's_lshr_b32 {s(S_T)}, {s(q)}, 1')
        p.e(f's_mul_i32 {s(o)}, {s(S_T)}, {NSTEP*4096}')
        p.e(f's_and_b32 {s(S_T)}, {s(q)}, 1')
        p.e(f's_lshl_b32 {s(S_T)}, {s(S_T)}, 11')
        p.e(f's_add_u32 {s(o)}, {s(o)}, {s(S_T)}')
        p.e(f's_add_u32 {s(o)}, {s(o)}, {WS_CTX}')
    p.e(f's_mov_b32 {s(S_THR)}, {f32hex(THR)}')
    p.e(f's_mov_b32 {s(S_THRE)}, {s(S_THR)}')
    p.e(f's_mov_b32 {s(S_NINF)}, 0xff800000')
    p.e(f's_mov_b32 {s(S_FLOOR)}, 0xff800000')
    p.e(f'v_lshrrev_b32 {v(V_T)}, 4, {v(V_LANE)}')
    p.e(f'v_lshlrev_b32 {v(V_T)}, 2, {v(V_T)}')
    p.e(f'v_and_b32 {v(V_T+1)}, 15, {v(V_LANE)}')
    p.e(f'v_sub_u32 {v(V_T)}, {v(V_T+1)}, {v(V_T)}')
    for r in range(4):
        p.e(f'v_cmp_gt_i32 {s(S_MSK+2*r,2)}, {r}, {v(V_T)}')
    for i in range(64):
        p.e(f'v_mov_b32 {v(V_O+i)}, 0')
    for i in range(8):
        p.e(f'v_mov_b32 {v(V_NM+i)}, 0')
    for i in range(2):
        p.e(f'v_mov_b32 {v(V_LB+i)}, 0')
    p.e(f'v_mov_b32 {v(V_KA)}, {v(V_L16)}')
    p.e(f'v_add_u32 {v(V_VA)}, {L_V}, {v(V_L16)}')
    st_.stamp(1)
    nst = k2a.compute(p, globals(), st_)
    p.e(f's_lshl_b32 {s(S_T)}, {s(S_H)}, 14')
    p.e(f's_add_u32 {s(S_CO)}, {s(S_CO)}, {s(S_T)}')
    p.e(f's_add_u32 {s(S_CO1)}, {s(S_CO1)}, {s(S_T)}')
    st_.stamp(4)
    p.ext(kreads(0, V_FA))
    p.ext(kreads(1, V_FB))
    p.ext(qk(V_SA, V_FA))
    q1 = qk(V_SB, V_FB)
    p.ext(q1[:8])
    p.e(f's_mov_b32 {s(S_N)}, 0')
    p.e(f's_sub_u32 {s(S_D)}, 0, {s(S_Q0)}')
    p.e(f's_add_u32 {s(S_DN)}, {s(S_D)}, 2')
    p.e(f's_waitcnt vmcnt({nst}) lgkmcnt(0)')
    p.e('s_barrier')
    p.ext(vreads(0))
    p.e(f'v_add_u32 {v(V_KA)}, 16384, {v(V_L16)}')
    p.ext(q1[8:12])
    p.e(f's_lshl_b32 {s(S_T)}, {s(S_MK)}, 1')
    p.e(f's_add_u32 m0, {s(S_T)}, {L_Q}')
    p.e(f's_sub_u32 {s(S_T+1)}, 15, {s(S_I)}')
    p.e(f's_lshl_b32 {s(S_T+1)}, {s(S_T+1)}, 15')
    p.e(f's_lshl_b32 {s(S_T+2)}, {s(S_H)}, 19')
    p.e(f's_add_u32 {s(S_T+1)}, {s(S_T+1)}, {s(S_T+2)}')
    p.e(f's_add_u32 {s(S_T+1)}, {s(S_T+1)}, {s(S_T)}')
    for j in range(4):
        p.e(f'buffer_load_dwordx4 {v(V_L16)}, {s(S_WS,4)}, {s(S_T+1)} offen offset:{j*1024} lds')
    p.ext(q1[12:])
    dma_tile_u(p, S_VOFF, S_SV, S_MV)
    dma_tile_u(p, S_VOFF, S_SV, S_MV)
    dma_tile_u(p, S_KOFF, S_SK, S_MK)
    st_.stamp(5)
    if FAKE & 2:
        for i in range(16):
            p.e(f'v_mov_b32 {v(V_X+i)}, 0')
    if PRIO:
        p.e(f's_cmp_eq_u32 {s(S_G)}, {PRIO-1}')
        p.e('s_cbranch_scc1 K2_NOPRIO')
        p.e('s_setprio 1')
        p.label('K2_NOPRIO')
    p.e(f's_cmp_lt_i32 {s(S_D)}, 0')
    p.e('s_cbranch_scc1 K2_FORCED')
    p.e(f's_mov_b32 {s(S_N)}, -1')
    p.e('s_branch K2_MASKA')

    p.label('K2_LOOP')
    p.e(f's_cmp_eq_u32 {s(S_N)}, {s(S_TR)}')
    p.e('s_cbranch_scc1 K2_QSW')
    p.label('K2_QRET')
    smB = spread(sm_list(V_SB, V_PB, V_LA, V_LB, S_THR), 32, 0, 31)
    g0, g1 = pv(V_PA), qk(V_SA)
    emit_groups(p, g0, interleave(g0, kreads(0), 0, 12), smB[:16])
    emit_groups(p, g1, interleave(g1, vreads(1), 0, 12), smB[16:])
    p.e(f's_cmp_ge_i32 {s(S_D)}, 0')
    p.e('s_cbranch_vccnz K2_SLOWM')
    p.label('K2_RETM')
    p.e('s_cbranch_scc1 K2_MASKA')
    p.label('K2_RETMA')
    smA = spread(sm_list(V_SA, V_PA, V_LB, V_LA, S_THRE), 32, 0, 31)
    g2, g3 = pv(V_PB), qk(V_SB)
    sc = [f's_add_u32 {s(S_T+2)}, {s(S_N)}, 2',
          f's_lshl1_add_u32 {s(S_T+3)}, {s(S_T+2)}, {s(S_ALT)}',
          f's_cmp_ge_u32 {s(S_T+2)}, {s(S_TT)}',
          f's_cselect_b32 {s(S_T+2)}, {s(S_T+3)}, {s(S_T+2)}',
          f's_cselect_b32 {s(S_T+3)}, {s(S_Q1)}, {s(S_Q0)}',
          f's_lshl_b32 {s(S_DN)}, {s(S_T+2)}, 1',
          f's_sub_u32 {s(S_DN)}, {s(S_DN)}, {s(S_T+3)}',
          f's_and_b32 {s(S_T+2)}, {s(S_T+2)}, 3',
          f's_lshl_b32 {s(S_T+2)}, {s(S_T+2)}, 14',
          f'v_add_u32 {v(V_VA)}, {L_V}, {v(V_KA)}',
          f'v_add_u32 {v(V_KA)}, {s(S_T+2)}, {v(V_L16)}',
          f's_add_u32 {s(S_T+3)}, {s(S_N)}, 3',
          f's_cmp_gt_u32 {s(S_T+3)}, {s(S_TT)}']
    scs = [[] for _ in range(16)]
    for k, x in enumerate(sc):
        scs[k + 2].append(x)
    emit_groups(p, g2, interleave(g2, kreads(1), 0, 8), smA[:16], scs)
    p.e('s_cbranch_scc1 K2_W0')
    p.e('s_waitcnt vmcnt(8) lgkmcnt(0)')
    p.e('s_branch K2_W1')
    p.label('K2_W0')
    p.e('s_waitcnt vmcnt(0) lgkmcnt(0)')
    p.label('K2_W1')
    p.e('s_barrier')
    ds = [[] for _ in range(16)]
    ds[0].append(lambda: dma_tile(p, S_KOFF, S_LIM, S_SK, S_MK, 'K2_D0'))
    ds[2] += [f's_add_u32 {s(S_N)}, {s(S_N)}, 1',
              f's_cmp_ge_u32 {s(S_N)}, {s(S_TT)}',
              f's_cselect_b32 {s(S_LIM2)}, {s(S_LIM)}, 0']
    ds[3].append(lambda: dma_tile(p, S_KOFF, S_LIM2, S_SK, S_MK, 'K2_D1'))
    ds[6].append(lambda: dma_tile(p, S_VOFF, S_LIM, S_SV, S_MV, 'K2_D2'))
    ds[8] += [f's_cmp_gt_u32 {s(S_N)}, {s(S_TT)}',
              f's_cselect_b32 {s(S_LIM2)}, {s(S_LIM)}, 0']
    ds[9].append(lambda: dma_tile(p, S_VOFF, S_LIM2, S_SV, S_MV, 'K2_D3'))
    emit_groups(p, g3, interleave(g3, vreads(0), 0, 12), smA[16:], ds)
    p.e('s_cbranch_vccnz K2_SLOWE')
    p.label('K2_RETE')
    p.e(f's_cmp_ge_i32 {s(S_D)}, -1')
    p.e('s_cbranch_scc1 K2_MASKB')
    p.label('K2_RETMB')
    p.e(f's_mov_b32 {s(S_D)}, {s(S_DN)}')
    if stamps:
        p.e(f's_add_u32 s92, {s(S_N)}, 6')
        st_.stamp_dyn(92)
    p.e(f's_cmp_lt_u32 {s(S_N)}, 16')
    p.e('s_cbranch_scc1 K2_LOOP')
    smT = spread(sm_list(V_SB, V_PB, V_LA, V_LB, S_THR), 16, 0, 16)
    vr1 = [f'ds_read_b128 {v(V_FB+4*j,4)}, {v(V_VA)} offset:{8192+j*1024}' for j in range(8)]
    emit_groups(p, g0, interleave(g0, vr1, 0, 8), smT)
    p.e('s_cbranch_vccnz K2_SLOWM')
    p.label('K2_RETT')
    xreduce(p, 'v_add_f32', [V_LB, V_LB + 1], [V_T, V_T + 1])
    p.ext([x.replace(x.split(', ')[1], v(V_FB + 4 * (i >> 1), 4)) for i, x in enumerate(g2) if x])
    p.e(f'v_mov_b32 {v(V_LA)}, {v(V_NM)}')
    p.e(f'v_mov_b32 {v(V_LA+1)}, {v(V_NM+4)}')
    p.e(f's_lshl_b32 {s(S_T)}, {s(S_W)}, 10')
    p.e(f's_add_u32 {s(S_T)}, {s(S_T)}, {L_Q}')
    p.e(f'v_add_u32 {v(V_VA)}, {s(S_T)}, {v(V_L16)}')
    p.e(f's_lshl_b32 {s(S_T)}, {s(S_W)}, 13')
    p.e(f'v_add_u32 {v(V_KA)}, {s(S_T)}, {v(V_L16)}')
    p.e(f'ds_write_b128 {v(V_VA)}, {v(V_LA,4)}')
    p.e(f's_lshl_b32 {s(S_T)}, {s(S_G)}, 13')
    p.e(f's_add_u32 {s(S_CO1)}, {s(S_CO1)}, {s(S_T)}')
    p.e(f's_add_u32 {s(S_CO)}, {s(S_CO1)}, 4096')
    p.e(f's_cmp_eq_u32 {s(S_G)}, 0')
    p.e('s_cbranch_scc0 K2_FIN1')
    for g in range(2):
        if g:
            p.label('K2_FIN1')
        keep, send = V_O + 32 * g, V_O + 32 * (1 - g)
        for j in range(8):
            p.e(f'ds_write_b128 {v(V_KA)}, {v(send+4*j,4)} offset:{j*1024}')
        p.e(f'v_xor_b32 {v(V_VA)}, 4096, {v(V_VA)}')
        p.e(f'v_xor_b32 {v(V_KA)}, 32768, {v(V_KA)}')
        p.e('s_waitcnt lgkmcnt(0)')
        p.e('s_barrier')
        p.e(f'ds_read_b128 {v(V_E,4)}, {v(V_VA)}')
        for j in range(8):
            p.e(f'ds_read_b128 {v(V_FA+4*j,4)}, {v(V_KA)} offset:{j*1024}')
        for qt in range(2):
            n, ca, cb = V_T + qt, V_SA + qt, V_SA + 2 + qt
            p.e(f'v_min_f32 {v(n)}, {v(V_LA+qt)}, {v(V_E+qt)}')
            p.e(f'v_sub_f32 {v(ca)}, {v(n)}, {v(V_LA+qt)}')
            p.e(f'v_sub_f32 {v(cb)}, {v(n)}, {v(V_E+qt)}')
            p.e(f'v_exp_f32 {v(ca)}, {v(ca)}')
            p.e(f'v_exp_f32 {v(cb)}, {v(cb)}')
            p.e(f'v_mul_f32 {v(n)}, {v(ca)}, {v(V_LB+qt)}')
            p.e(f'v_fmac_f32 {v(n)}, {v(cb)}, {v(V_E+2+qt)}')
            p.e(f'v_rcp_f32 {v(n)}, {v(n)}')
            p.e(f'v_mul_f32 {v(ca)}, {v(ca)}, {v(n)}')
            p.e(f'v_mul_f32 {v(cb)}, {v(cb)}, {v(n)}')
        for b in range(4):
            qt = b & 1
            for i in range(8):
                p.e(f'v_mul_f32 {v(keep+8*b+i)}, {v(keep+8*b+i)}, {v(V_SA+qt)}')
            for i in range(8):
                p.e(f'v_fmac_f32 {v(keep+8*b+i)}, {v(V_FA+8*b+i)}, {v(V_SA+2+qt)}')
            for i in range(4):
                p.e(f'v_cvt_pk_bf16_f32 {v(V_FB+4*b+i)}, {v(keep+8*b+2*i)}, {v(keep+8*b+2*i+1)}')
            p.e(f'buffer_store_dwordx4 {v(V_FB+4*b,4)}, {v(V_L16)}, {s(S_WS,4)}, {s(S_CO if b >> 1 else S_CO1)} offen offset:{qt*1024}')
        p.e('s_branch K2_FIN')

    p.label('K2_QSW')
    p.e(f's_lshl_b32 {s(S_T)}, {s(S_WQ)}, 13')
    p.e(f's_add_u32 {s(S_T)}, {s(S_T)}, {L_Q}')
    p.e(f'v_add_u32 {v(V_T)}, {s(S_T)}, {v(V_L16)}')
    for j in range(8):
        p.e(f'ds_read_b128 {v(V_Q+4*j,4)}, {v(V_T)} offset:{j*1024}')
    p.e(f's_mov_b32 {s(S_THRE)}, -1.0')
    p.e('s_branch K2_QRET')

    mask_block(p, V_SA, 'K2_MASKA', 'K2_MA_RET', 0)
    p.label('K2_MA_RET')
    p.e(f's_cmp_ge_i32 {s(S_N)}, 0')
    p.e('s_cbranch_scc1 K2_RETMA')
    p.e(f's_mov_b32 {s(S_N)}, 0')
    p.e('s_branch K2_FORCED')
    mask_block(p, V_SB, 'K2_MASKB', 'K2_RETMB', 1)

    p.label('K2_SLOWM')
    slow_core(p, V_SB, V_SA, V_PB, V_LA, V_LB, 'K2_SLOWM')
    p.e(f's_cmp_eq_u32 {s(S_N)}, 16')
    p.e('s_cbranch_scc1 K2_RETT')
    p.e(f's_cmp_ge_i32 {s(S_D)}, 0')
    p.e('s_branch K2_RETM')

    p.label('K2_SLOWE')
    p.e(f's_cmp_eq_u32 {s(S_THRE)}, {s(S_THR)}')
    p.e('s_cbranch_scc1 K2_FORCED')
    xreduce(p, 'v_add_f32', [V_LB, V_LB + 1], [V_T, V_T + 1])
    for qt in range(2):
        p.e(f'v_rcp_f32 {v(V_T+qt)}, {v(V_LB+qt)}')
    for b in range(8):
        qt = b & 1
        for i in range(8):
            p.e(f'v_mul_f32 {v(V_O+8*b+i)}, {v(V_O+8*b+i)}, {v(V_T+qt)}')
        d = (V_FB if FAKE & 2 else V_X) + 4 * (b & 3)
        for i in range(4):
            p.e(f'v_cvt_pk_bf16_f32 {v(d+i)}, {v(V_O+8*b+2*i)}, {v(V_O+8*b+2*i+1)}')
        p.e(f'buffer_store_dwordx4 {v(d,4)}, {v(V_L16)}, {s(S_WS,4)}, {s(S_CO)} offen offset:{qt*1024}')
        if qt:
            p.e(f's_add_u32 {s(S_CO)}, {s(S_CO)}, 4096')
        for i in range(8):
            p.e(f'v_mov_b32 {v(V_O+8*b+i)}, 0')
    for qt in range(2):
        p.e(f'v_mov_b32 {v(V_LB+qt)}, 0')
    p.e(f's_mov_b32 {s(S_THRE)}, {s(S_THR)}')
    p.e(f's_mov_b32 {s(S_FLOOR)}, 0xff800000')
    p.label('K2_FORCED')
    slow_core(p, V_SA, V_SB, V_PA, V_LB, V_LA, 'K2_SLOWE')
    p.e('s_branch K2_RETE')

    p.label('K2_FIN')
    st_.stamp(23)
    st_.flush(S_WS, S_W, WS_STAMP + 0x80000, 24, 6)
    p.label('K2_END')
    p.e('s_endpgm')
    p.finalize()
    return p
```

```python
from asmlib import *
from layout import *
import struct

KVP = 112
WPH = 144
QA = 148
WO = 156
T = 160


def f32hex(x):
    return '0x%08x' % struct.unpack('<I', struct.pack('<f', x))[0]


def loads(p, G):
    g = type('G', (), G)
    S_T, S_H, S_I, S_W, S_WS, S_A, V_LANE = g.S_T, g.S_H, g.S_I, g.S_W, g.S_WS, g.S_A, g.V_LANE
    ptr, OOB = G['ptr'], g.OOB
    a = S_T + 5
    p.e(f'v_lshlrev_b32 {v(T)}, 4, v0')
    p.e(f'v_mov_b32 {v(T+1)}, {OOB}')
    p.e(f'v_cmp_gt_u32 vcc, 384, v0')
    p.e(f'v_cndmask_b32 {v(T)}, {v(T+1)}, {v(T)}, vcc')
    p.e(f's_mul_i32 {s(a)}, {s(S_H)}, 6144')
    p.e(f's_add_u32 {s(a)}, {s(a)}, {WS_KVP}')
    for rb in range(8):
        p.e(f'buffer_load_dwordx4 {v(KVP+4*rb,4)}, {v(T)}, {s(S_WS,4)}, {s(a)} offen')
        if rb < 7:
            p.e(f's_add_u32 {s(a)}, {s(a)}, {32*6144}')
    p.e(f's_mul_i32 {s(a)}, {s(S_H)}, 800')
    p.e(f's_add_u32 {s(S_A)}, {s(ptr("A_w_phi"))}, {s(a)}')
    p.e(f's_addc_u32 {s(S_A+1)}, {s(ptr("A_w_phi")+1)}, 0')
    p.e(f's_mov_b32 {s(S_A+2)}, 800')
    p.e(f'buffer_load_dwordx4 {v(WPH,4)}, {v(g.V_L16)}, {s(S_A,4)}, 0 offen')
    p.e(f'v_and_b32 {v(T+2)}, 31, {v(V_LANE)}')
    p.e(f'v_lshlrev_b32 {v(T+2)}, 3, {v(T+2)}')
    p.e(f'v_lshrrev_b32 {v(T+3)}, 5, {v(V_LANE)}')
    p.e(f'v_lshl_add_u32 {v(T+3)}, {v(T+3)}, 15, {v(T+2)}')
    p.e(f'v_cmp_gt_u32 vcc, 32, {v(V_LANE)}')
    p.e(f'v_cndmask_b32 {v(T+2)}, {v(T+1)}, {v(T+2)}, vcc')
    p.e(f's_mul_i32 {s(a)}, {s(S_H)}, {5*16384}')
    p.e(f's_lshl_b32 {s(a+1)}, {s(g.S_Q0)}, 8')
    p.e(f's_add_u32 {s(a)}, {s(a)}, {s(a+1)}')
    p.e(f's_add_u32 {s(a)}, {s(a)}, {WS_QA}')
    p.e(f'buffer_load_dwordx2 {v(QA,2)}, {v(T+3)}, {s(S_WS,4)}, {s(a)} offen')
    p.e(f's_add_u32 {s(a+1)}, {s(a)}, 16384')
    p.e(f'buffer_load_dwordx2 {v(QA+2,2)}, {v(T+3)}, {s(S_WS,4)}, {s(a+1)} offen')
    p.e(f's_add_u32 {s(a)}, {s(a)}, 65536')
    p.e(f'buffer_load_dwordx2 {v(QA+4,2)}, {v(T+2)}, {s(S_WS,4)}, {s(a)} offen')
    p.e(f'v_mov_b32 {v(QA+6)}, 0')
    p.e(f'v_mov_b32 {v(QA+7)}, 0')


def compute(p, G, st_):
    g = type('G', (), G)
    S_T, S_H, S_I, S_W, S_WS, V_LANE, V_L16 = g.S_T, g.S_H, g.S_I, g.S_W, g.S_WS, g.V_LANE, g.V_L16
    OOB = g.OOB
    a = S_T + 5
    AKV, AW0, AW1, AWF, SGN, AO = T, T + 1, T + 2, T + 3, T + 4, T + 5
    t = T + 8
    p.e(f's_cmp_ge_u32 {s(S_W)}, 3')
    p.e(f's_cselect_b32 {s(S_T)}, {32*48-48}, 0')
    p.e(f's_lshl4_add_u32 {s(S_T)}, {s(S_W)}, {s(S_T)}')
    p.e(f's_add_u32 {s(S_T)}, {s(S_T)}, {g.L_KVF}')
    p.e(f'v_and_b32 {v(t)}, 31, {v(V_LANE)}')
    p.e(f'v_mul_u32_u24 {v(t)}, 48, {v(t)}')
    p.e(f'v_lshrrev_b32 {v(t+1)}, 5, {v(V_LANE)}')
    p.e(f'v_lshl_add_u32 {v(t)}, {v(t+1)}, 3, {v(t)}')
    p.e(f'v_add_u32 {v(AKV)}, {s(S_T)}, {v(t)}')
    p.e(f'v_bfe_u32 {v(t+2)}, {v(V_LANE)}, 2, 2')
    p.e(f'v_mul_u32_u24 {v(t+3)}, 40, {v(t+2)}')
    p.e(f'v_and_b32 {v(t)}, 16, {v(V_LANE)}')
    p.e(f'v_add_u32 {v(t+3)}, {v(t+3)}, {v(t)}')
    p.e(f'v_and_b32 {v(t)}, 2, {v(V_LANE)}')
    p.e(f'v_lshl_add_u32 {v(t+3)}, {v(t)}, 2, {v(t+3)}')
    p.e(f'v_add_u32 {v(AW1)}, {g.L_WI}, {v(t+3)}')
    p.e(f'v_mul_u32_u24 {v(t)}, 320, {v(t+1)}')
    p.e(f'v_add_u32 {v(AW0)}, {v(AW1)}, {v(t)}')
    p.e(f'v_lshlrev_b32 {v(t)}, 29, {v(V_LANE)}')
    p.e(f'v_and_b32 {v(t)}, 0x80000000, {v(t)}')
    p.e(f'v_lshrrev_b32 {v(SGN)}, 16, {v(t)}')
    p.e(f'v_or_b32 {v(SGN)}, {v(SGN)}, {v(t)}')
    p.e(f's_mul_i32 {s(S_T)}, {s(S_H)}, 5')
    p.e(f'v_and_b32 {v(t+2)}, 15, {v(V_LANE)}')
    p.e(f'v_lshlrev_b32 {v(t+2)}, 4, {v(t+2)}')
    p.e(f'v_and_b32 {v(t+3)}, 16, {v(V_LANE)}')
    p.e(f'v_lshl_add_u32 {v(t+2)}, {v(t+3)}, 6, {v(t+2)}')
    p.e(f'v_add_u32 {v(t+2)}, {128*4096}, {v(t+2)}')
    for i in range(3):
        p.e(f'v_add3_u32 {v(t)}, {v(t+1)}, {s(S_T)}, {2*i}')
        p.e(f'v_lshrrev_b32 {v(t+3)}, 3, {v(t)}')
        p.e(f'v_lshl_add_u32 {v(AO+i)}, {v(t+3)}, 12, {v(t+2)}')
        p.e(f'v_and_b32 {v(t+3)}, 3, {v(t)}')
        p.e(f'v_lshl_add_u32 {v(AO+i)}, {v(t+3)}, 8, {v(AO+i)}')
        p.e(f'v_and_b32 {v(t+3)}, 4, {v(t)}')
        p.e(f'v_lshl_add_u32 {v(AO+i)}, {v(t+3)}, 1, {v(AO+i)}')
    p.e(f'v_mov_b32 {v(t)}, {OOB}')
    p.e(f'v_cmp_gt_u32 vcc, 32, {v(V_LANE)}')
    p.e(f'v_cndmask_b32 {v(AO+2)}, {v(t)}, {v(AO+2)}, vcc')
    for step in (1, 2, 4):
        for b in range(0, 8, 2 * step):
            for i in range(4):
                p.e(f'v_add_f32 {v(KVP+4*b+i)}, {v(KVP+4*b+i)}, {v(KVP+4*(b+step)+i)}')
    p.e(f'v_cvt_pk_bf16_f32 {v(KVP)}, {v(KVP)}, {v(KVP+1)}')
    p.e(f'v_cvt_pk_bf16_f32 {v(KVP+1)}, {v(KVP+2)}, {v(KVP+3)}')
    p.e(f's_cmp_ge_u32 {s(S_W)}, 6')
    p.e('s_cbranch_scc1 K2A_NOKV')
    p.e(f'ds_write_b64 {v(AKV)}, {v(KVP,2)}')
    p.e('s_branch K2A_B1')
    p.label('K2A_NOKV')
    p.e(f'v_add_u32 {v(t)}, {g.L_WI}, {v(V_L16)}')
    p.e(f'ds_write_b128 {v(t)}, {v(WPH,4)}')
    p.label('K2A_B1')
    st_.stamp(2)
    p.e('s_waitcnt vmcnt(18) lgkmcnt(0)')
    p.e('s_barrier')
    st_.stamp(3)
    WF_, KVF, D0, PB, D2 = 24, 40, 112, 52, 64
    for tt in range(2):
        for ks in range(2):
            for j in range(2):
                p.e(f'ds_read_b64_tr_b16 {v(WF_+4*(2*tt+ks)+2*j,2)}, {v(AW1 if ks else AW0)} offset:{640*ks+160*j+32*tt}')
    p.e(f'v_mul_u32_u24 {v(t)}, 48, {v(V_LANE)}')
    p.e(f'v_add_u32 {v(t)}, {g.L_KVF}, {v(t)}')
    for k in range(3):
        p.e(f'ds_read_b128 {v(KVF+4*k,4)}, {v(t)} offset:{16*k}')
    for i in range(16):
        p.e(f'v_xor_b32 {v(WF_+i)}, {v(SGN)}, {v(WF_+i)}')
    for tt in range(2):
        for ks in range(2):
            d = v(D0 + 16 * tt, 16)
            p.e(f'v_mfma_f32_32x32x16_bf16 {d}, {v(WF_+4*(2*tt+ks),4)}, {v(QA+4*ks,4)}, {d if ks else 0}')
    sL = S_T
    p.e(f's_mov_b32 {s(sL)}, {f32hex(1.4426950408889634)}')
    p.e(f's_mov_b32 {s(sL+1)}, {s(sL)}')
    mx = t
    P = D0
    p.e(f'v_max3_f32 {v(mx)}, {v(P)}, {v(P+1)}, {v(P+2)}')
    p.e(f'v_max3_f32 {v(mx+1)}, {v(P+3)}, {v(P+4)}, {v(P+5)}')
    for i in range(6, 18, 4):
        p.e(f'v_max3_f32 {v(mx)}, {v(mx)}, {v(P+i)}, {v(P+i+1)}')
        p.e(f'v_max3_f32 {v(mx+1)}, {v(mx+1)}, {v(P+i+2)}, {v(P+i+3)}')
    p.e(f'v_max3_f32 {v(mx)}, {v(mx)}, {v(P+18)}, {v(P+19)}')
    p.e(f'v_max_f32 {v(mx)}, {v(mx)}, {v(mx+1)}')
    p.e(f'v_mul_f32 {v(mx)}, {s(sL)}, {v(mx)}')
    for i in range(0, 20, 2):
        p.e(f'v_pk_fma_f32 {v(P+i,2)}, {v(P+i,2)}, {s(sL,2)}, {v(mx,2)} op_sel_hi:[1,1,0] neg_lo:[0,0,1] neg_hi:[0,0,1]')
    for i in range(20):
        p.e(f'v_exp_f32 {v(P+i)}, {v(P+i)}')
    p.e(f'v_pk_add_f32 {v(mx,2)}, {v(P,2)}, {v(P+2,2)}')
    p.e(f'v_pk_add_f32 {v(mx+2,2)}, {v(P+4,2)}, {v(P+6,2)}')
    for i in range(8, 20, 4):
        p.e(f'v_pk_add_f32 {v(mx,2)}, {v(mx,2)}, {v(P+i,2)}')
        p.e(f'v_pk_add_f32 {v(mx+2,2)}, {v(mx+2,2)}, {v(P+i+2,2)}')
    p.e(f'v_pk_add_f32 {v(mx,2)}, {v(mx,2)}, {v(mx+2,2)}')
    p.e(f'v_add_f32 {v(mx)}, {v(mx)}, {v(mx+1)}')
    p.e(f'v_rcp_f32 {v(mx)}, {v(mx)}')
    p.e(f'v_mov_b32 {v(PB+10)}, 0')
    p.e(f'v_mov_b32 {v(PB+11)}, 0')
    for i in range(0, 20, 2):
        p.e(f'v_pk_mul_f32 {v(P+i,2)}, {v(P+i,2)}, {v(mx,2)} op_sel_hi:[1,0]')
    for i in range(10):
        p.e(f'v_cvt_pk_bf16_f32 {v(PB+i)}, {v(P+2*i)}, {v(P+2*i+1)}')
    d = v(D2, 16)
    for k in range(3):
        p.e(f'v_mfma_f32_32x32x16_bf16 {d}, {v(KVF+4*k,4)}, {v(PB+4*k,4)}, {d if k else 0}')
    p.e(f'v_add_f32 {v(mx)}, {f32hex(1e-6)}, {v(D2+12)}')
    p.e(f'v_rcp_f32 {v(mx)}, {v(mx)}')
    for i in range(0, 12, 2):
        p.e(f'v_pk_mul_f32 {v(D2+i,2)}, {v(D2+i,2)}, {v(mx,2)} op_sel_hi:[1,0]')
    for i in range(6):
        p.e(f'v_cvt_pk_bf16_f32 {v(WF_+i)}, {v(D2+2*i)}, {v(D2+2*i+1)}')
    for i in range(3):
        p.e(f'buffer_store_dwordx2 {v(WF_+2*i,2)}, {v(AO+i)}, {s(S_WS,4)}, {s(g.S_CO)} offen')
    return 3
```

```python
from asmlib import *
from layout import *
import os

V_LANE = 1
V_L16 = 2
V_OA = 3
V_T = 4
V_ACC = 8
V_F = 88
DEPTH = 4

S_W = 3
S_Q = 4
S_NT = 5
S_PTR = 8
S_SC = 16
S_SW = 20
S_SO = 24
S_CO = 28
S_WO = 29
S_CI = 30
S_WI = 31
S_CNT = 32
S_WO2 = 33
S_T = 34
S_WS = 44
S_CL = 48
S_CB = 49
S_WB = 50
ROT = int(os.environ.get('ROT', '0'))


def loads(k):
    F = V_F + 36 * k
    L = [f'buffer_load_dwordx4 {v(F+4*j,4)}, {v(V_L16)}, {s(S_SC,4)}, {s(S_CO)} offen offset:{1024*j}' for j in range(4)]
    W = [f'buffer_load_dwordx4 {v(F+16+4*j,4)}, {v(V_L16)}, {s(S_SW,4)}, {s(S_WO)} offen offset:{1024*j}' for j in range(4)]
    W.append(f'buffer_load_dwordx4 {v(F+32,4)}, {v(V_L16)}, {s(S_SW,4)}, {s(S_WO2)} offen')
    if ROT:
        o = [L[0], W[0], L[1], L[2], L[3],
             [W[1], f's_add_u32 {s(S_CO)}, {s(S_CO)}, {s(S_CI)}', f's_cmp_ge_u32 {s(S_CO)}, {s(S_CL)}'],
             [W[2], f's_cselect_b32 {s(S_T)}, {s(S_CB)}, 0', f's_cselect_b32 {s(S_T+1)}, {s(S_WB)}, {s(S_WI)}'],
             [W[3], f's_sub_u32 {s(S_CO)}, {s(S_CO)}, {s(S_T)}'],
             [W[4], f's_add_u32 {s(S_WO)}, {s(S_WO)}, {s(S_T+1)}', f's_add_u32 {s(S_WO2)}, {s(S_WO2)}, {s(S_T+1)}']]
        return o
    o = [L[0], W[0], L[1], L[2], L[3], W[1], W[2], W[3],
         [W[4], f's_add_u32 {s(S_CO)}, {s(S_CO)}, {s(S_CI)}', f's_add_u32 {s(S_WO)}, {s(S_WO)}, {s(S_WI)}',
          f's_add_u32 {s(S_WO2)}, {s(S_WO2)}, {s(S_WI)}']]
    return o


def build(name='k3_kernel', stamps=False):
    p = Prog()
    st_ = Stamps(p, 7, 90, stamps)
    p.e('s_cmp_ge_u32 s2, 256')
    p.e('s_cbranch_scc1 K3_END')
    st_.start()
    p.e(f's_load_dwordx2 {s(S_PTR,2)}, s[0:1], 80')
    p.e(f's_load_dwordx2 {s(S_PTR+4,2)}, s[0:1], 96')
    if int(os.environ.get('PF', '3')) & 4:
        code_prefetch(p, 6, 5, S_WS, 'k3_kernel', 'K3_END', 'K3')
    p.e(f'v_lshrrev_b32 {v(2)}, 6, v0')
    p.e(f'v_and_b32 {v(V_LANE)}, 63, v0')
    p.e(f'v_readfirstlane_b32 {s(S_W)}, {v(2)}')
    p.e(f'v_lshlrev_b32 {v(V_L16)}, 4, {v(V_LANE)}')
    p.e(f's_and_b32 {s(S_T)}, s2, 3')
    p.e(f's_bfe_u32 {s(S_T+1)}, s2, 0x30003')
    p.e(f's_lshl3_add_u32 {s(S_Q)}, {s(S_T)}, {s(S_T+1)}')
    p.e(f's_and_b32 {s(S_T)}, s2, 4')
    p.e(f's_lshr_b32 {s(S_T+1)}, s2, 6')
    p.e(f's_add_u32 {s(S_NT)}, {s(S_T)}, {s(S_T+1)}')
    K3X = int(os.environ.get('K3X', '0'))
    if K3X & 1:
        p.e(f's_mov_b32 {s(S_Q)}, 0')
    if K3X & 2:
        p.e(f's_mov_b32 {s(S_NT)}, 0')
    p.e(f's_mul_i32 {s(S_T)}, {s(S_Q)}, {NSTEP*4096}')
    p.e(f's_add_u32 {s(S_T)}, {s(S_T)}, {WS_CTX}')
    p.e(f's_mul_i32 {s(S_T+1)}, {s(S_NT)}, {NSTEP*5120}')
    p.e(f's_add_u32 {s(S_T+1)}, {s(S_T+1)}, {WS_WF}')
    p.e(f's_cmp_eq_u32 {s(S_W)}, 7')
    p.e(f's_cselect_b32 {s(S_T+2)}, 128, {s(S_W)}')
    p.e(f's_cselect_b32 {s(S_T+3)}, 1, 7')
    p.e(f's_movk_i32 {s(S_T+4)}, 128')
    p.e(f's_cselect_b32 {s(S_T+4)}, 148, {s(S_T+4)}')
    p.e(f's_cselect_b32 {s(S_CNT)}, 20, 18')
    p.e(f's_cmp_lt_u32 {s(S_W)}, 2')
    p.e(f's_cselect_b32 {s(S_CNT)}, 19, {s(S_CNT)}')
    if ROT:
        p.e(f's_lshl1_add_u32 {s(S_T+5)}, {s(S_NT)}, {s(S_Q)}')
        p.e(f's_and_b32 {s(S_T+5)}, {s(S_T+5)}, 7')
        p.e(f's_mul_i32 {s(S_T+5)}, {s(S_T+5)}, {s(S_T+3)}')
        p.e(f's_mul_i32 {s(S_T+5)}, {s(S_T+5)}, {ROT}')
        p.e(f's_add_u32 {s(S_T+2)}, {s(S_T+2)}, {s(S_T+5)}')
        p.e(f's_mul_i32 {s(S_T+5)}, {s(S_CNT)}, {s(S_T+3)}')
        p.e(f's_lshl_b32 {s(S_CB)}, {s(S_T+5)}, 12')
        p.e(f's_sub_u32 {s(S_T+5)}, {s(S_T+3)}, {s(S_T+5)}')
        p.e(f's_mul_i32 {s(S_WB)}, {s(S_T+5)}, 5120')
        p.e(f's_lshl_b32 {s(S_CL)}, {s(S_T+4)}, 12')
    p.e(f's_lshl_b32 {s(S_CO)}, {s(S_T+2)}, 12')
    p.e(f's_mul_i32 {s(S_WO)}, {s(S_T+2)}, 5120')
    p.e(f's_add_u32 {s(S_WO2)}, {s(S_WO)}, 4096')
    p.e(f's_lshl_b32 {s(S_CI)}, {s(S_T+3)}, 12')
    p.e(f's_mul_i32 {s(S_WI)}, {s(S_T+3)}, 5120')
    p.e(f's_lshl_b32 {s(S_SC+2)}, {s(S_T+4)}, 12')
    p.e(f's_mul_i32 {s(S_SW+2)}, {s(S_T+4)}, 5120')
    for r in (S_SC, S_SW, S_SO, S_WS):
        p.e(f's_mov_b32 {s(r+3)}, 0x00020000')
    p.e('s_waitcnt lgkmcnt(0)')
    p.e(f's_add_u32 {s(S_SC)}, {s(S_PTR+4)}, {s(S_T)}')
    p.e(f's_addc_u32 {s(S_SC+1)}, {s(S_PTR+5)}, 0')
    p.e(f's_add_u32 {s(S_SW)}, {s(S_PTR+4)}, {s(S_T+1)}')
    p.e(f's_addc_u32 {s(S_SW+1)}, {s(S_PTR+5)}, 0')
    for k in range(DEPTH - 1):
        p.ext(loads(k))
    p.e(f's_mov_b32 {s(S_SO)}, {s(S_PTR)}')
    p.e(f's_mov_b32 {s(S_SO+1)}, {s(S_PTR+1)}')
    p.e(f's_mov_b32 {s(S_SO+2)}, {2048*2560}')
    p.e(f's_mov_b32 {s(S_WS)}, {s(S_PTR+4)}')
    p.e(f's_mov_b32 {s(S_WS+1)}, {s(S_PTR+5)}')
    p.e(f's_mov_b32 {s(S_WS+2)}, {WS_SIZE}')
    for i in range(80):
        p.e(f'v_mov_b32 {v(V_ACC+i)}, 0')
    p.e(f'v_and_b32 {v(V_T)}, 15, {v(V_LANE)}')
    p.e(f'v_mul_u32_u24 {v(V_T)}, 2560, {v(V_T)}')
    p.e(f'v_lshrrev_b32 {v(V_OA)}, 4, {v(V_LANE)}')
    p.e(f'v_lshl_add_u32 {v(V_OA)}, {v(V_OA)}, 3, {v(V_T)}')
    st_.stamp(1)
    p.label('K3_LOOP')
    for k in range(DEPTH):
        F = V_F + 36 * k
        m = [f'v_mfma_f32_16x16x32_bf16 {v(V_ACC+4*(4*t+u),4)}, {v(F+16+4*t,4)}, {v(F+4*u,4)}, {v(V_ACC+4*(4*t+u),4)}'
             for t in range(5) for u in range(4)]
        sl = interleave(m, loads((k + DEPTH - 1) % DEPTH), 1, 19)
        for a, b in zip(m, sl):
            p.e(a)
            p.ext(b)
        p.e(f's_sub_u32 {s(S_CNT)}, {s(S_CNT)}, 1')
        if ROT:
            p.e(f's_cmp_le_u32 {s(S_CNT)}, {DEPTH-1}')
            p.e(f's_cselect_b32 {s(S_SC+2)}, 0, {s(S_SC+2)}')
            p.e(f's_cselect_b32 {s(S_SW+2)}, 0, {s(S_SW+2)}')
        p.e(f's_cmp_eq_u32 {s(S_CNT)}, 0')
        if k < DEPTH - 1:
            p.e('s_cbranch_scc1 K3_DONE')
        else:
            p.e('s_cbranch_scc0 K3_LOOP')
    p.label('K3_DONE')
    st_.stamp(2)
    p.e(f's_mul_i32 {s(S_T)}, {s(S_Q)}, {64*2560}')
    p.e(f's_mul_i32 {s(S_T+1)}, {s(S_NT)}, 160')
    p.e(f's_add_u32 {s(S_T)}, {s(S_T)}, {s(S_T+1)}')
    p.e(f's_cmp_eq_u32 {s(S_W)}, 7')
    p.e('s_cbranch_scc1 K3_A')
    p.e(f's_mul_i32 {s(S_T+1)}, {s(S_W)}, 20480')
    p.e(f'v_add_u32 {v(V_T)}, {s(S_T+1)}, {v(V_L16)}')
    for j in range(20):
        p.e(f'ds_write_b128 {v(V_T)}, {v(V_ACC+4*j,4)} offset:{1024*j}')
    p.e(f's_mul_i32 {s(S_T+1)}, {s(S_W)}, 3072')
    p.e(f'v_add_u32 {v(V_T)}, {s(S_T+1)}, {v(V_L16)}')
    p.e(f'v_add_u32 {v(V_T+1)}, {3*20480}, {v(V_T)}')
    p.e(f'v_add_u32 {v(V_T+2)}, {6*20480}, {v(V_T)}')
    p.e('s_waitcnt vmcnt(0) lgkmcnt(0)')
    p.e('s_barrier')
    R = V_F
    for j in range(3):
        for q in range(7):
            p.e(f'ds_read_b128 {v(R+4*(7*j+q),4)}, {v(V_T+q//3)} offset:{(q%3)*20480+1024*j}')
    p.e(f's_mul_i32 {s(S_T+1)}, {s(S_W)}, 3')
    for j in range(3):
        b = R + 28 * j
        for (x, y) in ((0, 1), (2, 3), (4, 5), (0, 2), (4, 6), (0, 4)):
            for i in range(0, 4, 2):
                p.e(f'v_pk_add_f32 {v(b+4*x+i,2)}, {v(b+4*x+i,2)}, {v(b+4*y+i,2)}')
        p.e(f'v_cvt_pk_bf16_f32 {v(b)}, {v(b)}, {v(b+1)}')
        p.e(f'v_cvt_pk_bf16_f32 {v(b+1)}, {v(b+2)}, {v(b+3)}')
        p.e(f's_and_b32 {s(S_T+2)}, {s(S_T+1)}, 3')
        p.e(f's_mul_i32 {s(S_T+2)}, {s(S_T+2)}, {16*2560}')
        p.e(f's_lshr_b32 {s(S_T+3)}, {s(S_T+1)}, 2')
        p.e(f's_lshl_b32 {s(S_T+3)}, {s(S_T+3)}, 5')
        p.e(f's_add_u32 {s(S_T+2)}, {s(S_T+2)}, {s(S_T+3)}')
        p.e(f's_add_u32 {s(S_T+2)}, {s(S_T+2)}, {s(S_T)}')
        if j == 2:
            p.e(f's_cmp_eq_u32 {s(S_W)}, 6')
            p.e('s_cbranch_scc1 K3_FIN')
        p.e(f'buffer_store_dwordx2 {v(b,2)}, {v(V_OA)}, {s(S_SO,4)}, {s(S_T+2)} offen offset:1280')
        p.e(f's_add_u32 {s(S_T+1)}, {s(S_T+1)}, 1')
    p.e('s_branch K3_FIN')
    p.label('K3_A')
    p.e('s_barrier')
    p.e('s_waitcnt vmcnt(0)')
    for u in range(4):
        for t in range(5):
            a = V_ACC + 4 * (4 * t + u)
            p.e(f'v_cvt_pk_bf16_f32 {v(a)}, {v(a)}, {v(a+1)}')
            p.e(f'v_cvt_pk_bf16_f32 {v(a+1)}, {v(a+2)}, {v(a+3)}')
            p.e(f'buffer_store_dwordx2 {v(a,2)}, {v(V_OA)}, {s(S_SO,4)}, {s(S_T)} offen offset:{32*t}')
        p.e(f's_add_u32 {s(S_T)}, {s(S_T)}, {16*2560}')
    p.label('K3_FIN')
    st_.stamp(3)
    st_.flush(S_WS, S_W, WS_STAMP + 0x100000, 4, 6)
    p.label('K3_END')
    p.e('s_endpgm')
    p.finalize()
    return p
```

```python
from asmlib import *
from layout import *
import struct, os


def f32hex(x):
    return '0x%08x' % struct.unpack('<I', struct.pack('<f', x))[0]


V_LANE = 1
V_L16 = 2
V_DMA = 3
V_KA = 4
V_VA = 5
V_LA = 8
V_LB = 10
V_T = 12
V_NM = 16
V_E = 24
V_PA = 32
V_PB = 40
V_SA = 48
V_SB = 64
V_Q = 80
V_FA = 112
V_FB = 144
V_O = 176
V_X = 240

S_W = 3
S_H = 4
S_I = 5
S_G = 6
S_WQ = 7
S_PTR = 8
S_WS = 36
S_SK = 40
S_SV = 44
S_A = 48
S_N = 52
S_TT = 53
S_KOFF = 54
S_VOFF = 55
S_LIM = 56
S_D = 57
S_DN = 58
S_ALT = 59
S_Q0 = 60
S_Q1 = 61
S_TR = 62
S_THR = 63
S_THRE = 64
S_FLOOR = 65
S_MK = 66
S_MV = 67
S_LIM2 = 68
S_CO = 69
S_CO1 = 70
S_NINF = 71
S_MSK = 72
S_T = 80

L_K = 0
L_V = 65536
L_Q = 131072
L_WFB = 98304
L_WFA = 122880
L_KVF = 147456
L_WI = 150528
OOB = 0x7FF00000
THR = 2.0 ** 100


def ptr(name):
    return S_PTR + KA[name] // 4


def O(dt, qt):
    return V_O + 4 * (((dt >> 1) * 2 + qt) * 2 + (dt & 1))


FAKE = int(os.environ.get('FAKE', '0'))
PRIO = int(os.environ.get('PRIO', '0'))
K2X = int(os.environ.get('K2X', '0'))


def pv(P):
    if FAKE & 1:
        L = []
        for D in range(4):
            for t in range(2):
                L.append(f'v_mfma_f32_32x32x16_bf16 {v(V_O+16*D,16)}, {v(V_FA+4*(2*D+t),4)}, {v(P+4*t,4)}, {v(V_O+16*D,16)}')
                L.append('')
        return L
    return [f'v_mfma_f32_16x16x32_bf16 {v(O(dt,qt),4)}, {v(V_FA+4*dt,4)}, {v(P+4*qt,4)}, {v(O(dt,qt),4)}'
            for dt in range(8) for qt in range(2)]


def qk(S, F=V_FB):
    L = []
    if FAKE & 2:
        for j in range(8):
            L.append(f'v_mfma_f32_32x32x16_bf16 {v(S,16)}, {v(F+4*j,4)}, {v(V_Q+4*j,4)}, {v(S,16) if j else v(V_X,16)}')
            L.append('')
        return L
    for kt in range(2):
        for ds in range(4):
            for qt in range(2):
                d = v(S + 4 * (2 * kt + qt), 4)
                c = d if ds else v(V_NM + 4 * qt, 4)
                L.append(f'v_mfma_f32_16x16x32_bf16 {d}, {v(F+4*(4*kt+ds),4)}, {v(V_Q+4*(4*qt+ds),4)}, {c}')
    return L


def kreads(a, F=V_FB):
    return [f'ds_read_b128 {v(F+4*j,4)}, {v(V_KA)} offset:{a*8192+j*1024}' for j in range(8)]


def vreads(a):
    return [f'ds_read_b128 {v(V_FA+4*j,4)}, {v(V_VA)} offset:{a*8192+j*1024}' for j in range(8)]


def sm_list(S, P, lold, lnew, thr):
    blocks = [(kt, qt) for kt in range(2) for qt in range(2)]
    ex, post = [], []
    for b, (kt, qt) in enumerate(blocks):
        E = V_E + 4 * (b & 1)
        src = S + 4 * (2 * kt + qt)
        ex.append([(f'v_exp_f32 {v(E+r)}, {v(src+r)}', 8) for r in range(4)])
        q = []
        for r in range(4):
            a = lold + qt if (kt == 0 and r == 0) else lnew + qt
            q.append((f'v_add_f32 {v(lnew+qt)}, {v(a)}, {v(E+r)}', 4))
            if r & 1:
                q.append((f'v_cvt_pk_bf16_f32 {v(P+4*qt+2*kt+(r>>1))}, {v(E+r-1)}, {v(E+r)}', 4))
        post.append(q)
    L = list(ex[0])
    for b in range(4):
        nx = ex[b + 1] if b < 3 else []
        q = post[b]
        order = [q[0], 0, q[1], q[2], 1, q[3], 2, q[4], q[5], 3]
        for o in order:
            if isinstance(o, int):
                if nx:
                    L.append(nx[o])
            else:
                L.append(o)
    if FAKE == 1:
        for i in range(4):
            L.append((f'v_permlane16_swap_b32 {v(P+i)}, {v(P+4+i)}', 4))
    if thr is not None:
        L.append((f'v_max_f32 {v(V_T)}, {v(lnew)}, {v(lnew+1)}', 4))
        L.append((f'v_cmp_lt_f32 vcc, {s(thr)}, {v(V_T)}', 4))
    return L


def spread(L, n, start, end):
    tot = sum(c for _, c in L)
    slots = [[] for _ in range(n)]
    acc = 0
    for ins, c in L:
        k = start + int((acc + c / 2) * (end - start) / tot)
        slots[min(k, end - 1)].append(ins)
        acc += c
    return slots


def dma_tile(p, off, lim, srd, mbase, lab):
    p.e(f's_cmp_lt_u32 {s(off)}, {s(lim)}')
    p.e(f's_cbranch_scc0 {lab}')
    p.e(f's_and_b32 {s(S_T)}, {s(off)}, 0xc000')
    p.e(f's_add_u32 m0, {s(S_T)}, {s(mbase)}')
    p.e(f's_add_u32 {s(S_T+1)}, {s(off)}, 16384')
    p.e(f'buffer_load_dwordx4 {v(V_DMA)}, {s(srd,4)}, {s(off)} offen lds')
    p.e(f'buffer_load_dwordx4 {v(V_DMA)}, {s(srd,4)}, {s(off)} offen offset:1024 lds')
    p.e(f's_mov_b32 {s(off)}, {s(S_T+1)}')
    p.label(lab)


def dma_half(p, h, off, lim, srd, mbase, lab):
    p.e(f's_cmp_lt_u32 {s(off)}, {s(lim)}')
    p.e(f's_cbranch_scc0 {lab}_{h}')
    if h == 0:
        p.e(f's_and_b32 {s(S_T)}, {s(off)}, 0xc000')
        p.e(f's_add_u32 m0, {s(S_T)}, {s(mbase)}')
        p.e(f's_nop 0')
        p.e(f'buffer_load_dwordx4 {v(V_DMA)}, {s(srd,4)}, {s(off)} offen lds')
    else:
        p.e(f'buffer_load_dwordx4 {v(V_DMA)}, {s(srd,4)}, {s(off)} offen offset:1024 lds')
        p.e(f's_add_u32 {s(off)}, {s(off)}, 16384')
    p.label(f'{lab}_{h}')


DPOS = [int(x) for x in os.environ.get('DPOS', '1,5,9,13,17,21,25,29').split(',')]


def dma_sched(p):
    ds = [[] for _ in range(48)]
    items = [(S_KOFF, S_LIM, S_SK, S_MK, 'K2_D0'), (S_KOFF, S_LIM2, S_SK, S_MK, 'K2_D1'),
             (S_VOFF, S_LIM, S_SV, S_MV, 'K2_D2'), (S_VOFF, S_LIM2, S_SV, S_MV, 'K2_D3')]
    ds[0].append(f's_add_u32 {s(S_N)}, {s(S_N)}, 1')
    for k, it in enumerate(items):
        a, b = DPOS[2 * k], DPOS[2 * k + 1]
        if k & 1:
            ds[a] += [f's_cmp_{"ge" if k == 1 else "gt"}_u32 {s(S_N)}, {s(S_TT)}',
                      f's_cselect_b32 {s(S_LIM2)}, {0 if K2X & 2 else s(S_LIM)}, 0']
        if a == b:
            ds[a].append(lambda it=it: dma_tile(p, *it))
        else:
            ds[a].append(lambda it=it: dma_half(p, 0, *it))
            ds[b].append(lambda it=it: dma_half(p, 1, *it))
    return ds


def dma_tile_u(p, off, srd, mbase):
    p.e(f's_and_b32 {s(S_T)}, {s(off)}, 0xc000')
    p.e(f's_add_u32 m0, {s(S_T)}, {s(mbase)}')
    p.e(f's_add_u32 {s(S_T+1)}, {s(off)}, 16384')
    p.e(f'buffer_load_dwordx4 {v(V_DMA)}, {s(srd,4)}, {s(off)} offen lds')
    p.e(f'buffer_load_dwordx4 {v(V_DMA)}, {s(srd,4)}, {s(off)} offen offset:1024 lds')
    p.e(f's_mov_b32 {s(off)}, {s(S_T+1)}')


def xreduce(p, op, regs, tmps):
    for sw in ('v_permlane16_swap_b32', 'v_permlane32_swap_b32'):
        for r, t in zip(regs, tmps):
            p.e(f'v_mov_b32 {v(t)}, {v(r)}')
        for r, t in zip(regs, tmps):
            p.e(f'{sw} {v(r)}, {v(t)}')
        for r, t in zip(regs, tmps):
            p.e(f'{op} {v(r)}, {v(r)}, {v(t)}')


def mask_block(p, S, lab, ret, dadj):
    p.label(lab)
    p.e(f's_cmp_eq_i32 {s(S_D)}, {-dadj}')
    p.e(f's_cbranch_scc1 {lab}_DG')
    for i in range(16):
        p.e(f'v_mov_b32 {v(S+i)}, {s(S_NINF)}')
    p.e(f's_branch {ret}')
    p.label(f'{lab}_DG')
    p.e(f'v_mov_b32 {v(V_T)}, {s(S_NINF)}')
    for r in range(4):
        p.e(f'v_cndmask_b32 {v(S+r)}, {v(S+r)}, {v(V_T)}, {s(S_MSK+2*r,2)}')
    for r in range(4):
        p.e(f'v_mov_b32 {v(S+8+r)}, {s(S_NINF)}')
    for r in range(4):
        p.e(f'v_cndmask_b32 {v(S+12+r)}, {v(S+12+r)}, {v(V_T)}, {s(S_MSK+2*r,2)}')
    p.e(f's_branch {ret}')


def slow_core(p, cur, nxt, P, lold, lnew, lab):
    mx = [V_T, V_T + 1]
    tm = [V_T + 2, V_T + 3]
    for qt in range(2):
        r = [cur + 4 * qt + i for i in range(4)] + [cur + 8 + 4 * qt + i for i in range(4)]
        p.e(f'v_max3_f32 {v(mx[qt])}, {v(r[0])}, {v(r[1])}, {v(r[2])}')
        p.e(f'v_max3_f32 {v(mx[qt])}, {v(mx[qt])}, {v(r[3])}, {v(r[4])}')
        p.e(f'v_max3_f32 {v(mx[qt])}, {v(mx[qt])}, {v(r[5])}, {v(r[6])}')
        p.e(f'v_max3_f32 {v(mx[qt])}, {v(mx[qt])}, {v(r[7])}, {s(S_FLOOR)}')
    xreduce(p, 'v_max_f32', mx, tm)
    for qt in range(2):
        for i in range(4):
            p.e(f'v_sub_f32 {v(V_NM+4*qt+i)}, {v(V_NM+4*qt+i)}, {v(mx[qt])}')
        for S in (cur, nxt):
            for kt in range(2):
                for i in range(4):
                    r = S + 8 * kt + 4 * qt + i
                    p.e(f'v_sub_f32 {v(r)}, {v(r)}, {v(mx[qt])}')
    p.e(f's_cmp_lg_u32 {s(S_FLOOR)}, 0')
    p.e(f's_cbranch_scc1 {lab}_NR')
    for qt in range(2):
        p.e(f'v_exp_f32 {v(tm[qt])}, -{v(mx[qt])}')
    for qt in range(2):
        p.e(f'v_mul_f32 {v(lold+qt)}, {v(lold+qt)}, {v(tm[qt])}')
        for dt in range(8):
            for i in range(4):
                r = O(dt, qt) + i
                p.e(f'v_mul_f32 {v(r)}, {v(r)}, {v(tm[qt])}')
    p.label(f'{lab}_NR')
    for ins, _ in sm_list(cur, P, lold, lnew, None):
        p.e(ins)
    p.e(f's_mov_b32 {s(S_FLOOR)}, 0')


def emit_groups(p, main, *slotlists):
    for i, m in enumerate(main):
        p.e(m)
        for sl in slotlists:
            for x in sl[i]:
                if callable(x):
                    x()
                else:
                    p.e(x)


def prologue_a(p, st_):
    pass


def build(name='k2_kernel', stamps=False):
    p = Prog()
    st_ = Stamps(p, 7, 90, stamps)
    p.e('s_cmp_ge_u32 s2, 256')
    p.e('s_cbranch_scc1 K2_END')
    st_.start()
    p.e(f's_load_dwordx2 {s(ptr("ws"),2)}, s[0:1], 96')
    p.e(f's_load_dwordx2 {s(ptr("A_w_phi"),2)}, s[0:1], 16')
    if int(os.environ.get('PF', '3')) & 4:
        code_prefetch(p, 6, 5, S_A, 'k2_kernel', 'K2_END', 'K2')
    p.e(f'v_lshrrev_b32 {v(2)}, 6, v0')
    p.e(f'v_and_b32 {v(V_LANE)}, 63, v0')
    p.e(f'v_readfirstlane_b32 {s(S_W)}, {v(2)}')
    p.e(f'v_lshlrev_b32 {v(V_L16)}, 4, {v(V_LANE)}')
    p.e(f's_and_b32 {s(S_T)}, s2, 7')
    p.e(f's_lshl_b32 {s(S_T)}, {s(S_T)}, 2')
    p.e(f's_bfe_u32 {s(S_H)}, s2, 0x20003')
    p.e(f's_add_u32 {s(S_H)}, {s(S_H)}, {s(S_T)}')
    p.e(f's_lshr_b32 {s(S_I)}, s2, 5')
    p.e(f's_lshr_b32 {s(S_G)}, {s(S_W)}, 2')
    p.e(f's_and_b32 {s(S_WQ)}, {s(S_W)}, 3')
    p.e(f's_lshl_b32 {s(S_MK)}, {s(S_W)}, 11')
    p.e(f's_add_u32 {s(S_MV)}, {s(S_MK)}, {L_V}')
    p.e(f'v_add_u32 {v(V_DMA)}, {s(S_MK)}, {v(V_L16)}')
    p.e(f's_lshl_b32 {s(S_TT)}, {s(S_I)}, 1')
    p.e(f's_sub_u32 {s(S_LIM)}, 32, {s(S_TT)}')
    p.e(f's_lshl_b32 {s(S_LIM)}, {s(S_LIM)}, 14')
    p.e(f's_add_u32 {s(S_TT)}, {s(S_TT)}, 2')
    p.e(f's_lshl_b32 {s(S_T)}, {s(S_I)}, 2')
    p.e(f's_add_u32 {s(S_Q0)}, {s(S_T)}, {s(S_WQ)}')
    p.e(f's_sub_u32 {s(S_Q1)}, 60, {s(S_T)}')
    p.e(f's_add_u32 {s(S_Q1)}, {s(S_Q1)}, {s(S_WQ)}')
    p.e(f's_sub_u32 {s(S_TR)}, {s(S_TT)}, 1')
    p.e(f's_cmp_eq_u32 {s(S_G)}, 0')
    p.e(f's_cselect_b32 {s(S_Q0)}, {s(S_Q0)}, {s(S_Q1)}')
    p.e(f's_cselect_b32 {s(S_TR)}, {s(S_TR)}, 99')
    p.e(f's_sub_u32 {s(S_ALT)}, {s(S_G)}, {s(S_TT)}')
    p.e(f's_mov_b32 {s(S_KOFF)}, 0')
    p.e(f's_mov_b32 {s(S_VOFF)}, 0')
    p.e(f's_lshl_b32 {s(S_T+2)}, {s(S_H)}, 19')
    for r in (S_WS, S_SK, S_SV, S_A):
        p.e(f's_mov_b32 {s(r+3)}, 0x00020000')
    p.e(f's_mov_b32 {s(S_WS+2)}, {WS_SIZE}')
    p.e(f's_mov_b32 {s(S_SK+2)}, 0x80000')
    p.e(f's_mov_b32 {s(S_SV+2)}, 0x80000')
    p.e(f's_add_u32 {s(S_T+3)}, {s(S_T+2)}, {WS_K}')
    p.e(f's_add_u32 {s(S_T+4)}, {s(S_T+2)}, {WS_V}')
    p.e('s_waitcnt lgkmcnt(0)')
    p.e(f's_mov_b32 {s(S_WS)}, {s(ptr("ws"))}')
    p.e(f's_mov_b32 {s(S_WS+1)}, {s(ptr("ws")+1)}')
    p.e(f's_add_u32 {s(S_SK)}, {s(ptr("ws"))}, {s(S_T+3)}')
    p.e(f's_addc_u32 {s(S_SK+1)}, {s(ptr("ws")+1)}, 0')
    p.e(f's_add_u32 {s(S_SV)}, {s(ptr("ws"))}, {s(S_T+4)}')
    p.e(f's_addc_u32 {s(S_SV+1)}, {s(ptr("ws")+1)}, 0')
    import k2a
    dma_tile_u(p, S_KOFF, S_SK, S_MK)
    p.e(f's_lshl_b32 {s(S_T+3)}, {s(S_Q0)}, 13')
    p.e(f's_add_u32 {s(S_T+3)}, {s(S_T+3)}, {s(S_T+2)}')
    p.e(f's_add_u32 {s(S_T+4)}, {s(S_T+3)}, 4096')
    for ds in range(4):
        for qt in range(2):
            p.e(f'buffer_load_dwordx4 {v(V_Q+4*(4*qt+ds),4)}, {v(V_L16)}, {s(S_WS,4)}, {s(S_T+3+qt)} offen offset:{ds*1024}')
    dma_tile_u(p, S_KOFF, S_SK, S_MK)
    dma_tile_u(p, S_VOFF, S_SV, S_MV)
    p.e(f's_mul_i32 {s(S_T)}, {s(S_H)}, 800')
    p.e(f's_add_u32 {s(S_A)}, {s(ptr("A_w_phi"))}, {s(S_T)}')
    p.e(f's_addc_u32 {s(S_A+1)}, {s(ptr("A_w_phi")+1)}, 0')
    p.e(f's_movk_i32 {s(S_A+2)}, 800')
    p.e(f's_lshl_b32 {s(S_T+1)}, {s(S_H)}, 14')
    p.e(f's_add_u32 {s(S_T+1)}, {s(S_T+1)}, {WS_CTX}')
    for q, o in ((S_Q0, S_CO), (S_Q1, S_CO1)):
        p.e(f's_lshr_b32 {s(S_T)}, {s(q)}, 1')
        p.e(f's_mul_i32 {s(o)}, {s(S_T)}, {NSTEP*4096}')
        p.e(f's_and_b32 {s(S_T)}, {s(q)}, 1')
        p.e(f's_lshl_b32 {s(S_T)}, {s(S_T)}, 11')
        p.e(f's_add_u32 {s(o)}, {s(o)}, {s(S_T)}')
        p.e(f's_add_u32 {s(o)}, {s(o)}, {s(S_T+1)}')
    p.e(f's_mov_b32 {s(S_THR)}, {f32hex(THR)}')
    p.e(f's_mov_b32 {s(S_THRE)}, {s(S_THR)}')
    p.e(f's_mov_b32 {s(S_NINF)}, 0xff800000')
    p.e(f's_mov_b32 {s(S_FLOOR)}, 0xff800000')
    p.e(f'v_lshrrev_b32 {v(V_T)}, 4, {v(V_LANE)}')
    p.e(f'v_lshlrev_b32 {v(V_T)}, 2, {v(V_T)}')
    p.e(f'v_and_b32 {v(V_T+1)}, 15, {v(V_LANE)}')
    p.e(f'v_sub_u32 {v(V_T)}, {v(V_T+1)}, {v(V_T)}')
    for r in range(4):
        p.e(f'v_cmp_gt_i32 {s(S_MSK+2*r,2)}, {r}, {v(V_T)}')
    for i in range(64):
        p.e(f'v_mov_b32 {v(V_O+i)}, 0')
    for i in range(8):
        p.e(f'v_mov_b32 {v(V_NM+i)}, 0')
    for i in range(2):
        p.e(f'v_mov_b32 {v(V_LB+i)}, 0')
    p.e(f'v_mov_b32 {v(V_KA)}, {v(V_L16)}')
    p.e(f'v_add_u32 {v(V_VA)}, {L_V}, {v(V_L16)}')
    p.e(f's_lshl_b32 {s(S_T)}, {s(S_WQ)}, 13')
    p.e(f's_add_u32 {s(S_T)}, {s(S_T)}, {L_Q}')
    p.e(f'v_add_u32 {v(V_T)}, {s(S_T)}, {v(V_L16)}')
    p.e(f's_mov_b32 {s(S_N)}, 0')
    p.e(f's_sub_u32 {s(S_D)}, 0, {s(S_Q0)}')
    p.e(f's_add_u32 {s(S_DN)}, {s(S_D)}, 2')
    st_.stamp(1)
    p.e(f's_waitcnt vmcnt(12)')
    p.e('s_barrier')
    st_.stamp(2)
    p.ext(kreads(0, V_FA))
    p.ext(kreads(1, V_FB))
    dma_tile_u(p, S_KOFF, S_SK, S_MK)
    dma_tile_u(p, S_VOFF, S_SV, S_MV)
    q0 = qk(V_SA, V_FA)
    p.ext(q0[:8])
    st_.stamp(3)
    dma_tile_u(p, S_KOFF, S_SK, S_MK)
    p.ext(q0[8:12])
    dma_tile_u(p, S_VOFF, S_SV, S_MV)
    p.ext(q0[12:])
    q1 = qk(V_SB, V_FB)
    p.e(f's_cmp_eq_u32 {s(S_G)}, 0')
    p.e('s_cbranch_scc1 K2_NOQS')
    for j in range(8):
        p.e(f'ds_write_b128 {v(V_T)}, {v(V_Q+4*j,4)} offset:{j*1024}')
    p.label('K2_NOQS')
    p.ext(q1[:8])
    p.e(f's_waitcnt vmcnt(8) lgkmcnt(0)')
    p.e('s_barrier')
    st_.stamp(4)
    p.ext(vreads(0))
    p.e(f'v_add_u32 {v(V_KA)}, 16384, {v(V_L16)}')
    p.ext(q1[8:12])
    dma_tile_u(p, S_KOFF, S_SK, S_MK)
    p.ext(q1[12:])
    assert DPOS[3] < 16 and (DPOS[4] >= 16 or DPOS[5] < 16) and (DPOS[6] >= 16 or DPOS[7] < 16)
    if DPOS[4] < 16:
        dma_tile_u(p, S_VOFF, S_SV, S_MV)
    st_.stamp(5)
    if FAKE & 2:
        for i in range(16):
            p.e(f'v_mov_b32 {v(V_X+i)}, 0')
    if PRIO:
        p.e(f's_cmp_eq_u32 {s(S_G)}, {PRIO-1}')
        p.e('s_cbranch_scc1 K2_NOPRIO')
        p.e('s_setprio 1')
        p.label('K2_NOPRIO')
    p.e(f's_cmp_lt_i32 {s(S_D)}, 0')
    p.e('s_cbranch_scc1 K2_FORCED')
    p.e(f's_mov_b32 {s(S_N)}, -1')
    p.e('s_branch K2_MASKA')

    p.label('K2_LOOP')
    p.e(f's_cmp_eq_u32 {s(S_N)}, {s(S_TR)}')
    p.e('s_cbranch_scc1 K2_QSW')
    p.label('K2_QRET')
    smB = spread(sm_list(V_SB, V_PB, V_LA, V_LB, S_THR), 32, 0, 31)
    g0, g1 = pv(V_PA), qk(V_SA)
    ds = dma_sched(p)
    emit_groups(p, g0, interleave(g0, kreads(0), 0, 12), smB[:16], ds[16:32])
    emit_groups(p, g1, interleave(g1, vreads(1), 0, 12), smB[16:], ds[32:])
    p.e(f's_cmp_ge_i32 {s(S_D)}, 0')
    p.e('s_cbranch_vccnz K2_SLOWM')
    p.label('K2_RETM')
    p.e('s_cbranch_scc1 K2_MASKA')
    p.label('K2_RETMA')
    smA = spread(sm_list(V_SA, V_PA, V_LB, V_LA, S_THRE), 32, 0, 31)
    g2, g3 = pv(V_PB), qk(V_SB)
    sc = [f's_add_u32 {s(S_T+2)}, {s(S_N)}, 2',
          f's_lshl1_add_u32 {s(S_T+3)}, {s(S_T+2)}, {s(S_ALT)}',
          f's_cmp_ge_u32 {s(S_T+2)}, {s(S_TT)}',
          f's_cselect_b32 {s(S_T+2)}, {s(S_T+3)}, {s(S_T+2)}',
          f's_cselect_b32 {s(S_T+3)}, {s(S_Q1)}, {s(S_Q0)}',
          f's_lshl_b32 {s(S_DN)}, {s(S_T+2)}, 1',
          f's_sub_u32 {s(S_DN)}, {s(S_DN)}, {s(S_T+3)}',
          f's_and_b32 {s(S_T+2)}, {s(S_T+2)}, 3',
          f's_lshl_b32 {s(S_T+2)}, {s(S_T+2)}, 14',
          f'v_add_u32 {v(V_VA)}, {L_V}, {v(V_KA)}',
          f'v_add_u32 {v(V_KA)}, {s(S_T+2)}, {v(V_L16)}',
          f's_add_u32 {s(S_T+3)}, {s(S_N)}, 3',
          f's_cmp_gt_u32 {s(S_T+3)}, {s(S_TT)}']
    scs = [[] for _ in range(16)]
    for k, x in enumerate(sc):
        scs[k + 2].append(x)
    emit_groups(p, g2, interleave(g2, kreads(1), 0, 8), smA[:16], scs)
    p.e('s_cbranch_scc1 K2_W0')
    p.e('s_waitcnt vmcnt(8) lgkmcnt(0)')
    p.e('s_branch K2_W1')
    p.label('K2_W0')
    p.e(f's_waitcnt vmcnt({8 if K2X & 1 else 0}) lgkmcnt(0)')
    p.label('K2_W1')
    p.e('s_barrier')
    emit_groups(p, g3, interleave(g3, vreads(0), 0, 12), smA[16:], ds[:16])
    p.e('s_cbranch_vccnz K2_SLOWE')
    p.label('K2_RETE')
    p.e(f's_cmp_ge_i32 {s(S_D)}, -1')
    p.e('s_cbranch_scc1 K2_MASKB')
    p.label('K2_RETMB')
    p.e(f's_mov_b32 {s(S_D)}, {s(S_DN)}')
    if stamps:
        p.e(f's_add_u32 s92, {s(S_N)}, 6')
        st_.stamp_dyn(92)
    p.e(f's_cmp_lt_u32 {s(S_N)}, 16')
    p.e('s_cbranch_scc1 K2_LOOP')
    p.e(f's_cmp_lt_u32 {s(S_I)}, 4')
    p.e('s_cbranch_scc1 K2_NOA3L')
    k2a.loads(p, globals())
    p.label('K2_NOA3L')
    smT = spread(sm_list(V_SB, V_PB, V_LA, V_LB, S_THR), 16, 0, 16)
    vr1 = [f'ds_read_b128 {v(V_FB+4*j,4)}, {v(V_VA)} offset:{8192+j*1024}' for j in range(8)]
    emit_groups(p, g0, interleave(g0, vr1, 0, 8), smT)
    p.e('s_cbranch_vccnz K2_SLOWM')
    p.label('K2_RETT')
    xreduce(p, 'v_add_f32', [V_LB, V_LB + 1], [V_T, V_T + 1])
    gt = [x.replace(x.split(', ')[1], v(V_FB + 4 * (i >> 1), 4)) for i, x in enumerate(g2) if x]
    for m, x in zip(gt, interleave(gt, k2a.kvsum(globals()), 0, 16)):
        p.e(m)
        p.ext(x)
    p.e(f'v_mov_b32 {v(V_LA)}, {v(V_NM)}')
    p.e(f'v_mov_b32 {v(V_LA+1)}, {v(V_NM+4)}')
    p.e(f's_lshl_b32 {s(S_T)}, {s(S_W)}, 10')
    p.e(f's_add_u32 {s(S_T)}, {s(S_T)}, {L_Q}')
    p.e(f'v_add_u32 {v(V_VA)}, {s(S_T)}, {v(V_L16)}')
    p.e(f's_lshl_b32 {s(S_T)}, {s(S_W)}, 13')
    p.e(f'v_add_u32 {v(V_KA)}, {s(S_T)}, {v(V_L16)}')
    p.e(f'ds_write_b128 {v(V_VA)}, {v(V_LA,4)}')
    p.e(f's_lshl_b32 {s(S_T)}, {s(S_G)}, 13')
    p.e(f's_add_u32 {s(S_CO1)}, {s(S_CO1)}, {s(S_T)}')
    p.e(f's_add_u32 {s(S_CO)}, {s(S_CO1)}, 4096')
    p.e(f's_cmp_eq_u32 {s(S_G)}, 0')
    p.e('s_cbranch_scc0 K2_FIN1')
    for g in range(2):
        if g:
            p.label('K2_FIN1')
        keep, send = V_O + 32 * g, V_O + 32 * (1 - g)
        for j in range(8):
            p.e(f'ds_write_b128 {v(V_KA)}, {v(send+4*j,4)} offset:{j*1024}')
        p.e(f'v_xor_b32 {v(V_VA)}, 4096, {v(V_VA)}')
        p.e(f'v_xor_b32 {v(V_KA)}, 32768, {v(V_KA)}')
        p.e('s_waitcnt lgkmcnt(0)')
        p.e('s_barrier')
        p.e(f'ds_read_b128 {v(V_E,4)}, {v(V_VA)}')
        for j in range(8):
            p.e(f'ds_read_b128 {v(V_FA+4*j,4)}, {v(V_KA)} offset:{j*1024}')
        p.ext(k2a.reads(globals()))
        for qt in range(2):
            n, ca, cb = V_T + qt, V_SA + qt, V_SA + 2 + qt
            p.e(f'v_min_f32 {v(n)}, {v(V_LA+qt)}, {v(V_E+qt)}')
            p.e(f'v_sub_f32 {v(ca)}, {v(n)}, {v(V_LA+qt)}')
            p.e(f'v_sub_f32 {v(cb)}, {v(n)}, {v(V_E+qt)}')
            p.e(f'v_exp_f32 {v(ca)}, {v(ca)}')
            p.e(f'v_exp_f32 {v(cb)}, {v(cb)}')
            p.e(f'v_mul_f32 {v(n)}, {v(ca)}, {v(V_LB+qt)}')
            p.e(f'v_fmac_f32 {v(n)}, {v(cb)}, {v(V_E+2+qt)}')
            p.e(f'v_rcp_f32 {v(n)}, {v(n)}')
            p.e(f'v_mul_f32 {v(ca)}, {v(ca)}, {v(n)}')
            p.e(f'v_mul_f32 {v(cb)}, {v(cb)}, {v(n)}')
        for b in range(4):
            qt = b & 1
            for i in range(8):
                p.e(f'v_mul_f32 {v(keep+8*b+i)}, {v(keep+8*b+i)}, {v(V_SA+qt)}')
            for i in range(8):
                p.e(f'v_fmac_f32 {v(keep+8*b+i)}, {v(V_FA+8*b+i)}, {v(V_SA+2+qt)}')
            for i in range(4):
                p.e(f'v_cvt_pk_bf16_f32 {v(V_FB+4*b+i)}, {v(keep+8*b+2*i)}, {v(keep+8*b+2*i+1)}')
            p.e(f'buffer_store_dwordx4 {v(V_FB+4*b,4)}, {v(V_L16)}, {s(S_WS,4)}, {s(S_CO if b >> 1 else S_CO1)} offen offset:{qt*1024}')
        p.e('s_branch K2_FIN')

    p.label('K2_QSW')
    p.e(f's_lshl_b32 {s(S_T)}, {s(S_WQ)}, 13')
    p.e(f's_add_u32 {s(S_T)}, {s(S_T)}, {L_Q}')
    p.e(f'v_add_u32 {v(V_T)}, {s(S_T)}, {v(V_L16)}')
    for j in range(8):
        p.e(f'ds_read_b128 {v(V_Q+4*j,4)}, {v(V_T)} offset:{j*1024}')
    p.e(f's_mov_b32 {s(S_THRE)}, -1.0')
    p.e('s_branch K2_QRET')

    mask_block(p, V_SA, 'K2_MASKA', 'K2_MA_RET', 0)
    p.label('K2_MA_RET')
    p.e(f's_cmp_ge_i32 {s(S_N)}, 0')
    p.e('s_cbranch_scc1 K2_RETMA')
    p.e(f's_mov_b32 {s(S_N)}, 0')
    p.e('s_branch K2_FORCED')
    mask_block(p, V_SB, 'K2_MASKB', 'K2_RETMB', 1)

    p.label('K2_SLOWM')
    slow_core(p, V_SB, V_SA, V_PB, V_LA, V_LB, 'K2_SLOWM')
    p.e(f's_cmp_eq_u32 {s(S_N)}, 16')
    p.e('s_cbranch_scc1 K2_RETT')
    p.e(f's_cmp_ge_i32 {s(S_D)}, 0')
    p.e('s_branch K2_RETM')

    p.label('K2_SLOWE')
    p.e(f's_cmp_eq_u32 {s(S_THRE)}, {s(S_THR)}')
    p.e('s_cbranch_scc1 K2_FORCED')
    xreduce(p, 'v_add_f32', [V_LB, V_LB + 1], [V_T, V_T + 1])
    for qt in range(2):
        p.e(f'v_rcp_f32 {v(V_T+qt)}, {v(V_LB+qt)}')
    for b in range(8):
        qt = b & 1
        for i in range(8):
            p.e(f'v_mul_f32 {v(V_O+8*b+i)}, {v(V_O+8*b+i)}, {v(V_T+qt)}')
        d = (V_FB if FAKE & 2 else V_X) + 4 * (b & 3)
        for i in range(4):
            p.e(f'v_cvt_pk_bf16_f32 {v(d+i)}, {v(V_O+8*b+2*i)}, {v(V_O+8*b+2*i+1)}')
        p.e(f'buffer_store_dwordx4 {v(d,4)}, {v(V_L16)}, {s(S_WS,4)}, {s(S_CO)} offen offset:{qt*1024}')
        if qt:
            p.e(f's_add_u32 {s(S_CO)}, {s(S_CO)}, 4096')
        for i in range(8):
            p.e(f'v_mov_b32 {v(V_O+8*b+i)}, 0')
    for qt in range(2):
        p.e(f'v_mov_b32 {v(V_LB+qt)}, 0')
    p.e(f's_mov_b32 {s(S_THRE)}, {s(S_THR)}')
    p.e(f's_mov_b32 {s(S_FLOOR)}, 0xff800000')
    p.label('K2_FORCED')
    slow_core(p, V_SA, V_SB, V_PA, V_LB, V_LA, 'K2_SLOWE')
    p.e('s_branch K2_RETE')

    p.label('K2_FIN')
    st_.stamp(23)
    p.e(f's_cmp_lt_u32 {s(S_I)}, 4')
    p.e('s_cbranch_scc1 K2_FIN2')
    k2a.compute(p, globals(), st_)
    p.label('K2_FIN2')
    st_.stamp(24)
    st_.flush(S_WS, S_W, WS_STAMP + 0x80000, 25, 6)
    p.label('K2_END')
    p.e('s_endpgm')
    p.finalize()
    return p
```

```python
from asmlib import *
from layout import *
import struct
from k1a2 import softmax1


def f32hex(x):
    return '0x%08x' % struct.unpack('<I', struct.pack('<f', x))[0]


def loads(p, G):
    g = type('G', (), G)
    S_T, S_H, S_I, S_W, S_WS, S_A, V_LANE = g.S_T, g.S_H, g.S_I, g.S_W, g.S_WS, g.S_A, g.V_LANE
    OOB = g.OOB
    KVP, QA = g.V_Q, g.V_X
    a = S_T
    T0, T1, T2, TO = 3, 4, 6, QA + 6
    p.e(f's_mov_b32 m0, {g.L_WI}')
    p.e(f's_mul_i32 {s(a)}, {s(S_H)}, 6144')
    p.e(f's_add_u32 {s(a)}, {s(a)}, {WS_KVP}')
    p.e(f'buffer_load_dwordx4 {v(g.V_L16)}, {s(S_A,4)}, 0 offen lds')
    p.e(f'v_lshlrev_b32 {v(T0)}, 4, v0')
    p.e(f'v_mov_b32 {v(TO)}, {OOB}')
    p.e(f'v_cmp_gt_u32 vcc, 384, v0')
    p.e(f'v_and_b32 {v(T1)}, 31, {v(V_LANE)}')
    p.e(f'v_lshlrev_b32 {v(T1)}, 3, {v(T1)}')
    p.e(f'v_cndmask_b32 {v(T0)}, {v(TO)}, {v(T0)}, vcc')
    p.e(f'v_lshrrev_b32 {v(T2)}, 5, {v(V_LANE)}')
    p.e(f'v_cmp_gt_u32 vcc, 32, {v(V_LANE)}')
    p.e(f'v_lshl_add_u32 {v(T2)}, {v(T2)}, 15, {v(T1)}')
    for rb in range(8):
        p.e(f'buffer_load_dwordx4 {v(KVP+4*rb,4)}, {v(T0)}, {s(S_WS,4)}, {s(a)} offen')
        if rb < 7:
            p.e(f's_add_u32 {s(a)}, {s(a)}, {32*6144}')
    p.e(f'v_cndmask_b32 {v(T1)}, {v(TO)}, {v(T1)}, vcc')
    p.e(f's_lshl3_add_u32 {s(g.S_Q0)}, {s(S_I)}, {s(S_W)}')
    p.e(f's_sub_u32 {s(g.S_Q0)}, {s(g.S_Q0)}, 32')
    p.e(f's_mul_i32 {s(a)}, {s(S_H)}, {5*16384}')
    p.e(f's_lshl_b32 {s(a+1)}, {s(g.S_Q0)}, 9')
    p.e(f's_add_u32 {s(a)}, {s(a)}, {s(a+1)}')
    p.e(f's_add_u32 {s(a)}, {s(a)}, {WS_QA}')
    p.e(f's_add_u32 {s(a+1)}, {s(a)}, 16384')
    p.e(f's_add_u32 {s(a+2)}, {s(a)}, 65536')
    for r in range(2):
        p.e(f'buffer_load_dwordx2 {v(QA+8*r,2)}, {v(T2)}, {s(S_WS,4)}, {s(a)} offen offset:{256*r}')
        p.e(f'buffer_load_dwordx2 {v(QA+8*r+2,2)}, {v(T2)}, {s(S_WS,4)}, {s(a+1)} offen offset:{256*r}')
        p.e(f'buffer_load_dwordx2 {v(QA+8*r+4,2)}, {v(T1)}, {s(S_WS,4)}, {s(a+2)} offen offset:{256*r}')


def kvsum(G):
    g = type('G', (), G)
    S_T, S_W, V_LANE = g.S_T, g.S_W, g.V_LANE
    KVP = g.V_Q
    t = g.V_SA + 4
    L = []
    e = L.append
    e([f's_cmp_ge_u32 {s(S_W)}, 3', f's_cselect_b32 {s(S_T)}, {32*48-48}, 0'])
    e(f's_lshl4_add_u32 {s(S_T)}, {s(S_W)}, {s(S_T)}')
    e([f's_cmp_ge_u32 {s(S_W)}, 6', f's_cselect_b32 {s(S_T)}, {g.L_WI+1024-g.L_KVF}, {s(S_T)}'])
    e(f's_add_u32 {s(S_T)}, {s(S_T)}, {g.L_KVF}')
    e(f'v_and_b32 {v(t)}, 31, {v(V_LANE)}')
    e(f'v_mad_u32_u24 {v(t)}, 48, {v(t)}, {s(S_T)}')
    e(f'v_lshrrev_b32 {v(t+1)}, 5, {v(V_LANE)}')
    e(f'v_lshl_add_u32 {v(t)}, {v(t+1)}, 3, {v(t)}')
    AW0, AW1, AKF = t + 4, t + 5, t + 6
    e(f'v_bfe_u32 {v(t+2)}, {v(V_LANE)}, 2, 2')
    e(f'v_and_b32 {v(t+3)}, 16, {v(V_LANE)}')
    e(f'v_mad_u32_u24 {v(t+3)}, 40, {v(t+2)}, {v(t+3)}')
    e(f'v_and_b32 {v(t+2)}, 2, {v(V_LANE)}')
    e(f'v_lshl_add_u32 {v(t+3)}, {v(t+2)}, 2, {v(t+3)}')
    e(f'v_add_u32 {v(AW1)}, {g.L_WI}, {v(t+3)}')
    e(f'v_mul_u32_u24 {v(t+2)}, 320, {v(t+1)}')
    e(f'v_add_u32 {v(AW0)}, {v(AW1)}, {v(t+2)}')
    e(f'v_mul_u32_u24 {v(AKF)}, 48, {v(V_LANE)}')
    e(f'v_add_u32 {v(AKF)}, {g.L_KVF}, {v(AKF)}')
    for step in (1, 2, 4):
        for b in range(0, 8, 2 * step):
            for i in range(0, 4, 2):
                e(f'v_pk_add_f32 {v(KVP+4*b+i,2)}, {v(KVP+4*b+i,2)}, {v(KVP+4*(b+step)+i,2)}')
    e(f'v_cvt_pk_bf16_f32 {v(KVP)}, {v(KVP)}, {v(KVP+1)}')
    e(f'v_cvt_pk_bf16_f32 {v(KVP+1)}, {v(KVP+2)}, {v(KVP+3)}')
    e(f'ds_write_b64 {v(t)}, {v(KVP,2)}')
    return L


def reads(G):
    g = type('G', (), G)
    t = g.V_SA + 4
    AW0, AW1, AKF = t + 4, t + 5, t + 6
    WF_, KVF = g.V_Q + 4, g.V_Q + 20
    L = []
    for tt in range(2):
        for ks in range(2):
            for j in range(2):
                L.append(f'ds_read_b64_tr_b16 {v(WF_+4*(2*tt+ks)+2*j,2)}, {v(AW1 if ks else AW0)} offset:{640*ks+160*j+32*tt}')
    for k in range(3):
        L.append(f'ds_read_b128 {v(KVF+4*k,4)}, {v(AKF)} offset:{16*k}')
    return L


def compute(p, G, st_):
    g = type('G', (), G)
    S_T, S_H, S_WS, V_LANE = g.S_T, g.S_H, g.S_WS, g.V_LANE
    OOB = g.OOB
    WF_, KVF, QA = g.V_Q + 4, g.V_Q + 20, g.V_X
    D0 = (176, 208)
    PB = (32, 44)
    D2 = (112, 128)
    SGN, AO, t = 8, 9, 12
    TM = (16, 20)
    p.e(f'v_lshlrev_b32 {v(t)}, 29, {v(V_LANE)}')
    p.e(f'v_and_b32 {v(t)}, 0x80000000, {v(t)}')
    p.e(f'v_lshrrev_b32 {v(SGN)}, 16, {v(t)}')
    p.e(f'v_or_b32 {v(SGN)}, {v(SGN)}, {v(t)}')
    for r in range(2):
        p.e(f'v_mov_b32 {v(QA+8*r+6)}, 0')
        p.e(f'v_mov_b32 {v(QA+8*r+7)}, 0')
    for i in range(16):
        p.e(f'v_xor_b32 {v(WF_+i)}, {v(SGN)}, {v(WF_+i)}')
    mf = []
    for r in range(2):
        for tt in range(2):
            for ks in range(2):
                d = v(D0[r] + 16 * tt, 16)
                mf.append(f'v_mfma_f32_32x32x16_bf16 {d}, {v(WF_+4*(2*tt+ks),4)}, {v(QA+8*r+4*ks,4)}, {d if ks else 0}')
    L = []
    e = L.append
    e(f's_mul_i32 {s(S_T+2)}, {s(S_H)}, 5')
    e(f'v_lshrrev_b32 {v(t+1)}, 5, {v(V_LANE)}')
    e(f'v_and_b32 {v(t+2)}, 15, {v(V_LANE)}')
    e(f'v_lshlrev_b32 {v(t+2)}, 4, {v(t+2)}')
    e(f'v_and_b32 {v(t+3)}, 16, {v(V_LANE)}')
    e(f'v_lshl_add_u32 {v(t+2)}, {v(t+3)}, 6, {v(t+2)}')
    for i in range(3):
        e(f'v_add3_u32 {v(t)}, {v(t+1)}, {s(S_T+2)}, {2*i}')
        e(f'v_lshrrev_b32 {v(t+3)}, 3, {v(t)}')
        e(f'v_lshl_add_u32 {v(AO+i)}, {v(t+3)}, 12, {v(t+2)}')
        e(f'v_and_b32 {v(t+3)}, 3, {v(t)}')
        e(f'v_lshl_add_u32 {v(AO+i)}, {v(t+3)}, 8, {v(AO+i)}')
        e(f'v_and_b32 {v(t+3)}, 4, {v(t)}')
        e(f'v_lshl_add_u32 {v(AO+i)}, {v(t+3)}, 1, {v(AO+i)}')
    e(f'v_cmp_gt_u32 vcc, 32, {v(V_LANE)}')
    e(f'v_mov_b32 {v(t)}, {OOB}')
    e(f's_mul_i32 {s(S_T+2)}, {s(g.S_Q0)}, {NSTEP*4096}')
    e(f's_add_u32 {s(S_T+2)}, {s(S_T+2)}, {WS_CTX+128*4096}')
    e(f'v_cndmask_b32 {v(AO+2)}, {v(t)}, {v(AO+2)}, vcc')
    sL = S_T
    e(f's_mov_b32 {s(sL)}, {f32hex(1.4426950408889634)}')
    e(f's_mov_b32 {s(sL+1)}, {s(sL)}')
    for r in range(2):
        e(f'v_mov_b32 {v(PB[r]+10)}, 0')
        e(f'v_mov_b32 {v(PB[r]+11)}, 0')
    for m, x in zip(mf, interleave(mf, L, 0, 6)):
        p.e(m)
        p.ext(x)

    def m2(r):
        d = v(D2[r], 16)
        return [f'v_mfma_f32_32x32x16_bf16 {d}, {v(KVF+4*k,4)}, {v(PB[r]+4*k,4)}, {d if k else 0}' for k in range(3)]

    def fin(r):
        mx = TM[r]
        L = [f'v_add_f32 {v(mx)}, {f32hex(1e-6)}, {v(D2[r]+12)}', f'v_rcp_f32 {v(mx)}, {v(mx)}']
        for i in range(0, 12, 2):
            L.append(f'v_pk_mul_f32 {v(D2[r]+i,2)}, {v(D2[r]+i,2)}, {v(mx,2)} op_sel_hi:[1,0]')
        for i in range(6):
            L.append(f'v_cvt_pk_bf16_f32 {v(D0[r]+i)}, {v(D2[r]+2*i)}, {v(D2[r]+2*i+1)}')
        for i in range(3):
            L.append(f'buffer_store_dwordx2 {v(D0[r]+2*i,2)}, {v(AO+i)}, {s(S_WS,4)}, {s(S_T+2)} offen offset:{2048*r}')
        return L
    p.ext(softmax1(p, D0[0], TM[0], sL, PB[0]))
    s1 = softmax1(p, D0[1], TM[1], sL, PB[1])
    sl = interleave(s1, m2(0), 2, 20)
    for x, y in zip(s1, sl):
        p.e(x)
        p.ext(y)
    f0 = fin(0)
    sl = interleave(f0, m2(1), 2, 14)
    for x, y in zip(f0, sl):
        p.e(x)
        p.ext(y)
    p.ext(fin(1))
```
